```python
import torch

def _softmax(x, axis=-1):
    return torch.softmax(x, dim=axis)
def _gelu(x):
    return torch.nn.functional.gelu(x, approximate="tanh")
def _silu(x):
    return torch.nn.functional.silu(x)
def _sigmoid(x):
    return torch.sigmoid(x)
def _layernorm(x, axis=-1, eps=1e-5):
    m = x.mean(dim=axis, keepdim=True)
    v = x.var(dim=axis, keepdim=True, unbiased=False)
    return (x - m) / torch.sqrt(v + eps)
def _scatter_add(tgt, idx, src, axis=0):
    return tgt.clone().index_add_(axis, idx, src)
def _segment_sum(src, seg, n):
    out = torch.zeros((n,) + src.shape[1:], dtype=src.dtype)
    return out.index_add_(0, seg, src)
def _pad(x, pw):
    flat = tuple(v for pair in reversed(pw) for v in pair)
    return torch.nn.functional.pad(x, flat)

kernel_name = 'sequential_preLN__mha_block_cached__dense_activation_silu__decode'

def setup_inputs():

    _w = (lambda a: (lambda t: t.to(torch.bfloat16) if t.is_floating_point() else t)(torch.as_tensor(a)))
    def _A_setup():
        B, Sq, D = 1, 1, 512
        H, Sk, Dh = 32, 65536, 128
        return {
            "x": _w((lambda *s: torch.randn(*s, dtype=torch.bfloat16) * 0.1)(B, Sq, D)),
            "k_cache": _w((lambda *s: torch.randn(*s, dtype=torch.bfloat16) * 1.6)(B, H, Sk, Dh)),
            "v_cache": _w((lambda *s: torch.randn(*s, dtype=torch.bfloat16) * 1.6)(B, H, Sk, Dh)),
            "wq": _w((lambda *s: torch.randn(*s, dtype=torch.bfloat16) * 1.6)(D, H * Dh) * (D ** -0.5)),
            "wo": _w((lambda *s: torch.randn(*s, dtype=torch.bfloat16) * 1.6)(H * Dh, D) * ((H * Dh) ** -0.5)),
        }
    _A_in = _A_setup()

    def _B_setup():
        B, S, D, F = 1, 1, 512, 1792
        return {
            "x": _w((lambda *s: torch.randn(*s, dtype=torch.bfloat16) * 0.1)(B, S, D)),
            "w1": _w((lambda *s: torch.randn(*s, dtype=torch.bfloat16) * 3.2)(D, F) * (D ** -0.5)),
            "w2": _w((lambda *s: torch.randn(*s, dtype=torch.bfloat16) * 3.2)(F, D) * (F ** -0.5)),
        }
    _B_in = _B_setup()

    return {
        "A_x": _A_in["x"],
        "A_k_cache": _A_in["k_cache"],
        "A_v_cache": _A_in["v_cache"],
        "A_wq": _A_in["wq"],
        "A_wo": _A_in["wo"],
        "B_x": _B_in["x"],
        "B_w1": _B_in["w1"],
        "B_w2": _B_in["w2"],
    }

def reference(A_x, A_k_cache, A_v_cache, A_wq, A_wo, B_x, B_w1, B_w2):
    def _A_ref(x, k_cache, v_cache, wq, wo):
        B, Sq, D = x.shape
        H, Dh = 32, 128
        q = (lambda x, *d: x.permute(*d))((x @ wq).reshape(B, Sq, H, Dh), 0, 2, 1, 3)
        scores = torch.einsum("bhqd,bhkd->bhqk", q, k_cache) * (Dh ** -0.5)
        p = _softmax(scores, axis=-1)
        o = torch.einsum("bhqk,bhkd->bhqd", p, v_cache)
        return (lambda x, *d: x.permute(*d))(o, 0, 2, 1, 3).reshape(B, Sq, H * Dh) @ wo

    def _B_ref(x, w1, w2):
        h = torch.einsum("bsd,df->bsf", x, w1)
        h = _silu(h)
        out = torch.einsum("bsf,fd->bsd", h, w2)
        return out

    x = A_x
    h = x + _A_ref(_layernorm(x, axis=-1), A_k_cache, A_v_cache, A_wq, A_wo)
    h2 = h + _B_ref(_layernorm(h, axis=-1), B_w1, B_w2)
    return h2
```

```python
import re

TRANS = ('v_exp_f32', 'v_log_f32', 'v_rcp_f32', 'v_rsq_f32', 'v_sqrt_f32', 'v_sin_f32', 'v_cos_f32')
REG_RE = re.compile(r'^-?\|?(?:abs\()?([vsa])(?:(\d+)|\[(\d+):(\d+)\])\)?\|?$')


def regs_of(tok):
    tok = tok.strip()
    if tok in ('vcc', 'vcc_lo', 'vcc_hi'):
        return {('s', 'vcc')}
    if tok == 'exec':
        return {('s', 'exec')}
    if tok == 'm0':
        return {('s', 'm0')}
    m = REG_RE.match(tok)
    if not m:
        return set()
    k = m.group(1)
    if m.group(2) is not None:
        return {(k, int(m.group(2)))}
    return {(k, i) for i in range(int(m.group(3)), int(m.group(4)) + 1)}


class Ins:
    def __init__(self, text):
        self.text = text
        body = text.split(';')[0].strip()
        self.is_label = body.endswith(':')
        self.is_dir = body.startswith('.')
        self.empty = not body
        self.kind = None
        self.dst = set()
        self.src = set()
        self.srcc = set()
        self.srcab = set()
        self.states = 1
        if self.is_label or self.is_dir or self.empty:
            self.states = 0
            return
        parts = body.split(None, 1)
        self.op = op = parts[0]
        rest = parts[1] if len(parts) > 1 else ''
        raw = [x.strip() for x in re.split(r',(?![^\[]*\])', rest)] if rest else []
        ops = []
        mods = ''
        for i, r in enumerate(raw):
            p = r.split(None, 1)
            ops.append(p[0] if p else '')
            if len(p) > 1:
                mods += ' ' + p[1]
        self.mods = mods
        R = [regs_of(o) for o in ops]
        allr = lambda lst: set().union(*lst) if lst else set()
        if op == 's_nop':
            self.kind = 'salu'
            self.states = int(ops[0], 0) + 1
            return
        if op.startswith('v_mfma'):
            self.kind = 'mfma'
            self.dst = R[0]
            self.srcab = R[1] | R[2]
            self.srcc = R[3]
            self.src = self.srcab | self.srcc
        elif op.startswith('v_'):
            self.kind = 'valu'
            self.trans = op.replace('_e32', '').replace('_e64', '') in TRANS
            self.dpp = ('_dpp' in op)
            self.dot = op.startswith('v_dot')
            self.rdlane = op.startswith('v_readlane') or op.startswith('v_readfirstlane')
            self.perm = op.startswith('v_permlane')
            if self.perm:
                self.dst = R[0] | R[1]
                self.src = R[0] | R[1]
            else:
                self.dst = set(R[0])
                self.src = allr(R[1:])
                if op.startswith('v_fmac') or op.startswith('v_dot2c') or self.dpp:
                    self.src |= R[0]
                if self.dot:
                    self.srcab = R[1] | R[2]
                    self.srcc = R[3] if len(R) > 3 else R[0]
                if '_co_' in op:
                    self.dst |= R[1]
                    self.src = allr(R[2:])
        elif op.startswith('buffer_') or op.startswith('global_'):
            self.kind = 'vmem'
            self.lds = ' lds' in (mods + ' ')
            self.wide_store = False
            if 'load' in op:
                if self.lds:
                    self.src = allr(R) | {('s', 'm0')}
                else:
                    self.dst = R[0]
                    self.src = allr(R[1:])
            elif 'store' in op:
                self.src = allr(R)
                if op.endswith('x4') or op.endswith('x3'):
                    self.wide_store = True
                    self.data = R[0] if op.startswith('buffer_') else R[1]
            else:
                self.src = allr(R)
                if ' sc0' in mods:
                    self.dst = R[0]
        elif op.startswith('ds_'):
            self.kind = 'ds'
            if 'read' in op or 'bpermute' in op or 'swizzle' in op:
                self.dst = R[0]
                self.src = allr(R[1:])
            else:
                self.src = allr(R)
        elif op.startswith('s_'):
            self.kind = 'salu'
            if op.startswith(('s_cmp', 's_waitcnt', 's_barrier', 's_branch', 's_cbranch', 's_endpgm', 's_sleep',
                              's_setprio', 's_setpc')):
                self.src = allr(R)
            else:
                self.dst = R[0] if R else set()
                self.src = allr(R[1:])
        else:
            raise ValueError('unknown instruction: ' + text)


def need(p, c):
    n = 0
    V = lambda s: {r for r in s if r[0] in 'va'}
    S = lambda s: {r for r in s if r[0] == 's'}
    if p.kind == 'valu':
        wv = V(p.dst)
        ws = S(p.dst)
        if c.kind == 'valu':
            if wv & c.src:
                if c.dpp: n = max(n, 2)
                if c.rdlane: n = max(n, 1)
                if c.perm: n = max(n, 2)
                if p.trans: n = max(n, 1)
            if p.dot:
                if c.dot and c.op == p.op:
                    if wv & c.srcab: n = max(n, 3)
                elif wv & (c.src | c.dst):
                    n = max(n, 3)
            if ws & c.src:
                n = max(n, 4 if c.rdlane else 2)
        elif c.kind == 'mfma':
            if wv & c.src: n = max(n, 3 if p.dot else 2)
        elif c.kind in ('vmem', 'ds'):
            if ws & c.src: n = max(n, 5)
            if wv & c.src:
                if p.dot: n = max(n, 3)
                if p.trans: n = max(n, 1)
        elif c.kind == 'salu':
            if ws & c.src: n = max(n, 1)
    elif p.kind == 'mfma':
        d = p.dst
        if c.kind == 'mfma':
            if d & c.srcab: n = max(n, 8)
            if d & c.srcc and c.srcc != d: n = max(n, 6)
            if d & c.dst and c.srcc != d and not (d & c.srcc): n = max(n, 6)
        elif c.kind == 'valu':
            if d & (c.src | c.dst): n = max(n, 8)
            if V(p.srcc) & c.dst: n = max(n, 3)
        elif c.kind in ('vmem', 'ds'):
            if d & (c.src | c.dst): n = max(n, 8)
    elif p.kind == 'salu':
        if ('s', 'm0') in p.dst and c.kind == 'vmem' and c.lds: n = max(n, 1)
    elif p.kind == 'vmem':
        if p.wide_store and (p.data & c.dst):
            n = max(n, 2)
    return n


class Asm:
    def __init__(self):
        self.lines = []

    def __call__(self, text):
        for t in text.split('\n'):
            t = t.strip()
            if t:
                self.lines.append(t)

    def padded(self):
        out = []
        hist = []
        for t in self.lines:
            c = Ins(t)
            if c.states == 0:
                out.append(t)
                continue
            req = 0
            dist = 0
            for p in reversed(hist):
                r = need(p, c) - dist
                req = max(req, r)
                dist += p.states
                if dist >= 12:
                    break
            if req > 0:
                nop = Ins(f's_nop {req-1}')
                out.append(nop.text)
                hist.append(nop)
            out.append(t)
            hist.append(c)
            hist = hist[-16:]
        return out

    def text(self):
        res = []
        for t in self.padded():
            if t.endswith(':') or t.startswith('.') or t.startswith(';'):
                res.append(t)
            else:
                res.append('    ' + t)
        return '\n'.join(res) + '\n'
```

```python
import sys, os
sys.path.insert(0, os.path.dirname(os.path.abspath(__file__)))
from asmlib import Asm

NAME = 'sequential_preLN__mha_block_cached__dense_activation_silu__decode'
KERN = NAME + '_kernel'

XT, QP, PART, PARTML, OB, YB, HB, WO, W1, W2, LDS_END = 0, 2048, 4096, 6144, 6400, 7424, 7680, 9216, 25600, 33792, 40960
PO, PML, YOFF, GOFF, WS_USED, DIAG, WS_DIAG = 0, 0x20000, 0x28000, 0x2C000, 0x2D000, 0x40000, 0x60000

LOG2E = 0x3fb8aa3b
SCALE = 0x3db504f3
DPP = 'row_mask:0xf bank_mask:0xf'


def gen(N=5, R=24, msk=5, diag=False, wpol='nt', kvpol='nt', catch=3, lds=LDS_END, slp=0):
    a = Asm()
    RING = 28
    slot = lambda k: RING + 4 * (k % R)
    vr = lambda b, n: f'v[{b}:{b+n-1}]'
    stamps = {'n': 0}

    def stamp(i):
        if diag:
            a(f's_memrealtime s[{64+2*i}:{65+2*i}]')
            a('s_waitcnt lgkmcnt(0)')

    def dump_stamps(n, srd):
        if not diag:
            return
        a('s_mov_b64 exec, 1')
        a('s_lshl_b32 s62, s2, 3')
        a('s_add_u32 s62, s62, s3')
        a('s_lshl_b32 s62, s62, 6')
        a(f's_add_u32 s62, s62, {DIAG}')
        a('v_mov_b32 v1, s62')
        for i in range(n):
            a(f'v_mov_b32 v2, s{64+2*i}')
            a(f'buffer_store_dword v2, v1, {srd}, 0 offen offset:{4*i}')
            a('s_nop 1')
        a('s_getreg_b32 s62, hwreg(HW_REG_XCC_ID)')
        a('v_mov_b32 v2, s62')
        a(f'buffer_store_dword v2, v1, {srd}, 0 offen offset:60')
        a('s_waitcnt vmcnt(0)')

    def srd(d, lo, hi, size):
        a(f's_mov_b32 s{d}, s{lo}')
        a(f's_mov_b32 s{d+1}, s{hi}')
        a(f's_mov_b32 s{d+2}, {size}')
        a(f's_mov_b32 s{d+3}, 0x20000')

    def masks(M, t0, t1, t2):
        a(f'v_and_b32 v{t0}, 1, v0')
        a(f'v_cmp_eq_u32 vcc, 1, v{t0}')
        a(f'v_mov_b32 v{t1}, 0xffff')
        a(f'v_mov_b32 v{t2}, 0xffff0000')
        a(f'v_cndmask_b32 v{t1}, v{t1}, v{t2}, vcc')
        a(f'v_bfe_u32 v{t0}, v0, 1, 3')
        for i in range(4):
            a(f'v_cmp_eq_u32 vcc, {i}, v{t0}')
            a(f'v_cndmask_b32 v{M+i}, 0, v{t1}, vcc')

    def reduce64(t, s):
        for r in (8, 4, 2, 1):
            a(f'v_add_f32_dpp v{t}, v{t}, v{t} row_ror:{r} {DPP}')
        a(f'v_add_f32_dpp v{t}, v{t}, v{t} row_bcast:15 row_mask:0xa bank_mask:0xf')
        a(f'v_add_f32_dpp v{t}, v{t}, v{t} row_bcast:31 row_mask:0xc bank_mask:0xf')
        a(f'v_readlane_b32 s{s}, v{t}, 63')

    def layernorm(P, F, T, s, dup):
        for i in range(4):
            a(f'v_lshlrev_b32 v{F+2*i}, 16, v{P+i}')
            a(f'v_and_b32 v{F+2*i+1}, 0xffff0000, v{P+i}')
        a(f'v_add_f32 v{T}, v{F}, v{F+1}')
        a(f'v_add_f32 v{T+1}, v{F+2}, v{F+3}')
        a(f'v_add_f32 v{T+2}, v{F+4}, v{F+5}')
        a(f'v_add_f32 v{T+3}, v{F+6}, v{F+7}')
        a(f'v_add_f32 v{T}, v{T}, v{T+1}')
        a(f'v_add_f32 v{T+2}, v{T+2}, v{T+3}')
        a(f'v_add_f32 v{T}, v{T}, v{T+2}')
        a(f'v_mov_b32 v{T+3}, 0x3b000000')
        reduce64(T, s)
        a(f'v_mul_f32 v{T+1}, s{s}, v{T+3}')
        for i in range(8):
            a(f'v_sub_f32 v{T+2}, v{F+i}, v{T+1}')
            if i == 0:
                a(f'v_mul_f32 v{T}, v{T+2}, v{T+2}')
            else:
                a(f'v_fmac_f32 v{T}, v{T+2}, v{T+2}')
        a(f'v_cvt_pk_bf16_f32 v{T+1}, 0, v{T+1}')
        reduce64(T, s)
        for i in range(8):
            a(f'v_sub_f32 v{F+i}, v{F+i}, v{T+1}')
        a(f'v_mul_f32 v{T}, s{s}, v{T+3}')
        a(f'v_cvt_pk_bf16_f32 v{T}, 0, v{T}')
        a(f'v_add_f32 v{T}, 0x3727c5ac, v{T}')
        a(f'v_cvt_pk_bf16_f32 v{T}, 0, v{T}')
        a(f'v_sqrt_f32 v{T}, v{T}')
        for i in range(4):
            a(f'v_cvt_pk_bf16_f32 v{F+i}, 0, v{F+i}')
        a(f'v_cvt_pk_bf16_f32 v{T}, 0, v{T}')
        a(f'v_rcp_f32 v{T}, v{T}')
        for i in range(4, 8):
            a(f'v_cvt_pk_bf16_f32 v{F+i}, 0, v{F+i}')
        for i in range(8):
            a(f'v_mul_f32 v{F+i}, v{F+i}, v{T}')
        if dup:
            for i in range(8):
                a(f'v_cvt_pk_bf16_f32 v{F+i}, v{F+i}, v{F+i}')
        else:
            for i in range(4):
                a(f'v_cvt_pk_bf16_f32 v{P+i}, v{F+2*i}, v{F+2*i+1}')

    def check_poison(regs, t):
        regs = list(regs)
        a(f'v_max3_u32 v{t}, v{regs[0]}, v{regs[1]}, v{regs[2]}')
        rest = regs[3:]
        while len(rest) >= 2:
            a(f'v_max3_u32 v{t}, v{t}, v{rest[0]}, v{rest[1]}')
            rest = rest[2:]
        if rest:
            a(f'v_max_u32 v{t}, v{t}, v{rest[0]}')
        a(f'v_cmp_eq_u32 vcc, -1, v{t}')

    def retry(lbl):
        a(f's_cbranch_vccz {lbl}_ok')
        if slp:
            a(f's_sleep {slp}')
        a('s_sub_u32 s63, s63, 1')
        a(f's_cbranch_scc0 {lbl}')
        a(f'{lbl}_ok:')

    a(f'{KERN}:')
    stamp(0)
    a('s_cmp_ge_u32 s2, 256')
    a('s_cbranch_scc1 L_end')
    a('v_lshrrev_b32 v1, 6, v0')
    a('v_readfirstlane_b32 s3, v1')
    a('v_and_b32 v0, 63, v0')
    a('s_and_b32 s4, s2, 7')
    a('s_lshr_b32 s5, s2, 3')
    a('s_lshl_b32 s6, s4, 5')
    a('s_add_u32 s6, s6, s5')
    a('s_lshr_b32 s7, s6, 3')
    a('s_cmp_ge_u32 s3, 4')
    a('s_cbranch_scc1 L_helper')

    a('s_load_dwordx4 s[24:27], s[0:1], 8')
    if diag:
        a('s_load_dwordx2 s[36:37], s[0:1], 80')
    a('v_lshlrev_b32 v1, 4, v0')
    a('s_lshl_b32 s21, s3, 10')
    a('v_add_u32 v1, s21, v1')
    if msk == 5:
        a('s_lshr_b32 s18, s5, 1'); a('s_and_b32 s18, s18, 7'); a('s_lshl_b32 s18, s18, 12')
    elif msk == 0:
        a('s_mov_b32 s18, 0')
    elif msk == 6:
        a('s_lshl_b32 s18, s5, 15')
    a('s_mov_b32 s16, 0')
    a(f's_mov_b32 s20, {LOG2E:#x}')
    a('s_lshl_b32 s21, s6, 21')
    a('s_mov_b32 s10, 0x200000'); a('s_mov_b32 s11, 0x20000')
    a('s_mov_b32 s14, 0x200000'); a('s_mov_b32 s15, 0x20000')
    a('s_waitcnt lgkmcnt(0)')
    a('s_add_u32 s8, s24, s21'); a('s_addc_u32 s9, s25, 0')
    a('s_add_u32 s12, s26, s21'); a('s_addc_u32 s13, s27, 0')
    if diag:
        a(f's_mov_b32 s38, {WS_DIAG}'); a('s_mov_b32 s39, 0x20000')

    TOT = 1024
    st = {'p': 0, 'landed': -1, 'nstub': 0}
    stubs = []

    def issue():
        k = st['p']
        if k % 2 == 0:
            a('s_xor_b32 s17, s16, s18')
            a('s_add_u32 s16, s16, 4096')
            a(f'buffer_load_dwordx4 {vr(slot(k),4)}, v1, s[8:11], s17 offen {kvpol}')
        else:
            a(f'buffer_load_dwordx4 {vr(slot(k),4)}, v1, s[12:15], s17 offen {kvpol}')
        st['p'] += 1

    def wait_landed(e):
        if st['landed'] < e:
            a(f's_waitcnt vmcnt({st["p"]-1-e})')
            st['landed'] = e

    Q, MK, ACC, A = 24, 6, 10, 20

    def consume(e):
        wait_landed(e)
        s = slot(e)
        if e % 2 == 0:
            a(f'v_dot2_f32_bf16 v17, v{s}, v{Q}, 0')
            for i in range(1, 4):
                a(f'v_dot2_f32_bf16 v17, v{s+i}, v{Q+i}, v17')
            for r in (8, 4, 2, 1):
                a(f'v_add_f32_dpp v17, v17, v17 row_ror:{r} {DPP}')
            a('v_cvt_pk_bf16_f32 v17, 0, v17')
            a(f'v_mul_f32 v17, {SCALE:#x}, v17')
            a('v_cvt_pk_bf16_f32 v17, 0, v17')
            a('v_cmp_gt_f32 vcc, v17, v16')
            n = st['nstub']; st['nstub'] += 1
            stubs.append(n)
            a(f's_cbranch_vccnz L_stub{n}')
            a(f'L_back{n}:')
            a('v_fma_f32 v18, v17, s20, v15')
            a('v_exp_f32 v18, v18')
        else:
            a('v_cvt_pk_bf16_f32 v19, v18, v18')
            a('v_add_f32 v14, v14, v18')
            for i in range(4):
                a(f'v_and_b32 v{A+i}, v19, v{MK+i}')
            a(f'v_mfma_f32_16x16x32_bf16 {vr(ACC,4)}, {vr(A,4)}, {vr(s,4)}, {vr(ACC,4)}')

    for k in range(R):
        if k >= N:
            wait_landed(k - N)
        issue()
    stamp(1)
    a('s_barrier')
    stamp(2)
    a('v_and_b32 v26, 15, v0')
    a('v_lshlrev_b32 v26, 5, v26')
    for h, b in ((0, 2), (1, 10), (2, 18)):
        a(f'ds_read_b128 {vr(b,4)}, v26 offset:{QP+h*512}')
        a(f'ds_read_b128 {vr(b+4,4)}, v26 offset:{QP+h*512+16}')
    a('s_waitcnt lgkmcnt(2)')
    for i in range(8):
        a(f'v_add_f32 v{2+i}, v{2+i}, v{10+i}')
    a(f'ds_read_b128 v[10:13], v26 offset:{QP+1536}')
    a(f'ds_read_b128 v[14:17], v26 offset:{QP+1536+16}')
    a('s_waitcnt lgkmcnt(2)')
    for i in range(8):
        a(f'v_add_f32 v{2+i}, v{2+i}, v{18+i}')
    a('s_waitcnt lgkmcnt(0)')
    for i in range(8):
        a(f'v_add_f32 v{2+i}, v{2+i}, v{10+i}')
    for i in range(4):
        a(f'v_cvt_pk_bf16_f32 v{Q+i}, v{2+2*i}, v{3+2*i}')
    masks(MK, 2, 3, 4)
    for i in range(4):
        a(f'v_mov_b32 v{ACC+i}, 0')
    a('v_mov_b32 v14, 0')
    a('v_mov_b32 v16, 0xff7fffff')
    a('v_mov_b32 v15, 0x7f7fffff')
    e = 0
    while st['p'] - e > N:
        consume(e)
        e += 1
        if e % catch == 0 and st['p'] - e > N:
            wait_landed(st['p'] - N)
            issue()
    nloop = (TOT - N - e) // R
    a(f's_mov_b32 s19, {nloop}')
    a('L_loop:')
    for i in range(R):
        wait_landed(e)
        issue()
        consume(e)
        e += 1
    a('s_sub_u32 s19, s19, 1')
    a('s_cmp_lg_u32 s19, 0')
    a('s_cbranch_scc1 L_loop')
    e += (nloop - 1) * R
    st['p'] += (nloop - 1) * R
    st['landed'] += (nloop - 1) * R
    while e < TOT:
        wait_landed(e)
        if st['p'] < TOT:
            issue()
        consume(e)
        e += 1
    assert st['p'] == TOT
    stamp(3)
    a('v_add_f32_dpp v14, v14, v14 row_bcast:15 row_mask:0xa bank_mask:0xf')
    a('v_and_b32 v2, 15, v0')
    a('v_lshrrev_b32 v3, 4, v0')
    a('v_add_f32_dpp v14, v14, v14 row_bcast:31 row_mask:0xc bank_mask:0xf')
    a('v_lshlrev_b32 v2, 5, v2')
    a('v_lshl_add_u32 v2, v3, 4, v2')
    a('s_lshl_b32 s21, s3, 9')
    a('v_add_u32 v2, s21, v2')
    a('s_lshl_b32 s21, s3, 3')
    a('v_mov_b32 v3, s21')
    a('s_mov_b32 exec_hi, 0')
    a(f'ds_write_b128 v2, {vr(ACC,4)} offset:{PART}')
    a('s_mov_b32 exec_lo, 0')
    a('s_mov_b32 exec_hi, 0x80000000')
    a(f'ds_write_b64 v3, v[14:15] offset:{PARTML}')
    a('s_waitcnt lgkmcnt(0)')
    a('s_barrier')
    dump_stamps(4, 's[36:39]')
    a('s_endpgm')
    for n in stubs:
        a(f'L_stub{n}:')
        a('s_call_b64 s[30:31], L_rescale')
        a(f's_branch L_back{n}')
    a('L_rescale:')
    a('s_nop 7')
    a('v_mov_b32 v2, v17')
    a('v_max_f32_dpp v2, v17, v17 row_bcast:15 row_mask:0xa bank_mask:0xf')
    a('v_max_f32_dpp v2, v2, v2 row_bcast:31 row_mask:0xc bank_mask:0xf')
    a('v_readlane_b32 s21, v2, 63')
    a('v_mov_b32 v16, s21')
    a('v_mul_f32 v2, s20, v16')
    a('v_sub_f32 v2, 0, v2')
    a('v_sub_f32 v3, v2, v15')
    a('v_exp_f32 v3, v3')
    a('v_mov_b32 v15, v2')
    for i in range(4):
        a(f'v_mul_f32 v{ACC+i}, v{ACC+i}, v3')
    a('v_mul_f32 v14, v14, v3')
    a('s_setpc_b64 s[30:31]')

    SX, SWQ, SWO, SW1, SW2, SOUT, SDBG, SWS = ('s[%d:%d]' % (b, b + 3) for b in (8, 12, 16, 20, 24, 28, 32, 36))
    a('L_helper:')
    a('s_load_dwordx2 s[40:41], s[0:1], 0')
    a('s_load_dwordx4 s[44:47], s[0:1], 24')
    a('s_load_dwordx4 s[48:51], s[0:1], 48')
    a('s_load_dwordx4 s[52:55], s[0:1], 64')
    a('s_load_dwordx2 s[56:57], s[0:1], 80')
    a('s_sub_u32 s58, s3, 4')
    a('v_lshlrev_b32 v1, 4, v0')
    a('v_lshrrev_b32 v15, 4, v0')
    a('v_and_b32 v14, 15, v0')
    a('v_lshlrev_b32 v14, 4, v14')
    a('v_lshl_add_u32 v14, v15, 15, v14')
    a('v_lshlrev_b32 v15, 4, v15')
    a('s_lshl_b32 s59, s58, 9')
    a('v_add_u32 v15, s59, v15')
    a('s_lshl_b32 s59, s58, 20')
    a('s_lshl_b32 s60, s7, 8')
    a('s_add_u32 s59, s59, s60')
    a('s_and_b32 s60, s6, 7')
    a('s_mov_b32 s63, 0x100000')
    a('s_waitcnt lgkmcnt(0)')
    srd(8, 40, 41, 1024)
    srd(12, 44, 45, 512*4096*2)
    a(f'buffer_load_dwordx4 v[2:5], v1, {SX}, 0 offen')
    hp = {'p': 0}

    def wq_issue():
        t = hp['p']
        u, i = t >> 2, t & 3
        if i == 0:
            a(f's_add_u32 s61, s60, {u}')
            a('s_and_b32 s61, s61, 7')
            a('s_lshl_b32 s61, s61, 17')
            a('s_add_u32 s61, s61, s59')
        else:
            a('s_add_u32 s61, s61, 8192')
        a(f'buffer_load_dwordx4 {vr(RING+4*(t%24),4)}, v14, {SWQ}, s61 offen {wpol}')
        hp['p'] += 1

    for t in range(24):
        wq_issue()
    srd(16, 46, 47, 4096*512*2)
    srd(20, 48, 49, 512*1792*2)
    srd(24, 50, 51, 1792*512*2)
    srd(28, 52, 53, 1024)
    srd(32, 54, 55, 256)
    srd(36, 56, 57, WS_DIAG if diag else WS_USED)
    masks(6, 10, 11, 12)
    a('s_waitcnt vmcnt(24)')
    stamp(1)
    layernorm(2, 16, 24, 62, True)
    a('v_lshlrev_b32 v1, 5, v0')
    a(f'ds_write_b128 v1, v[16:19] offset:{XT}')
    a(f'ds_write_b128 v1, v[20:23] offset:{XT+16}')
    a('s_waitcnt lgkmcnt(0)')

    def dup_read(u):
        a(f's_add_u32 s62, s60, {u}')
        a('s_and_b32 s62, s62, 7')
        a('s_lshl_b32 s62, s62, 6')
        a('v_add_u32 v1, s62, v15')
        a(f'ds_read_b128 {vr(16 if u % 2 == 0 else 24, 4)}, v1 offset:{XT}')

    dup_read(0)
    for u in range(8):
        if u < 7:
            dup_read(u + 1)
            a('s_waitcnt lgkmcnt(1)')
        else:
            a('s_waitcnt lgkmcnt(0)')
        D = 16 if u % 2 == 0 else 24
        for i in range(4):
            t = 4 * u + i
            for k in range(4):
                a(f'v_and_b32 v{20+k}, v{D+i}, v{6+k}')
            a(f's_waitcnt vmcnt({hp["p"]-1-t})')
            a(f'v_mfma_f32_16x16x32_bf16 v[10:13], v[20:23], {vr(RING+4*(t%24),4)}, {"0" if t == 0 else "v[10:13]"}')
            if hp['p'] < 32:
                wq_issue()
    a('v_and_b32 v2, 15, v0')
    a('v_lshrrev_b32 v3, 4, v0')
    a('v_lshlrev_b32 v2, 5, v2')
    a('v_lshl_add_u32 v2, v3, 4, v2')
    a('s_lshl_b32 s59, s58, 9')
    a('v_add_u32 v2, s59, v2')
    a('s_mov_b32 exec_hi, 0')
    a(f'ds_write_b128 v2, v[10:13] offset:{QP}')
    a('s_mov_b64 exec, -1')
    a('s_waitcnt lgkmcnt(0)')
    stamp(2)
    a('s_barrier')

    WOF, WXF = 48, 64
    a('v_mov_b32 v16, -1')
    a('v_mov_b32 v17, -1')
    a('v_mov_b32 v18, 1')
    a('v_mov_b32 v10, 0')
    a('v_and_b32 v13, 31, v0')
    a('v_lshrrev_b32 v14, 5, v0')
    a('v_lshrrev_b32 v15, 4, v0')
    a('s_cmp_eq_u32 s58, 1')
    a('s_cbranch_scc1 L_h1_init')
    a('s_cmp_eq_u32 s58, 2')
    a('s_cbranch_scc1 L_h2_init')
    a('s_cmp_eq_u32 s58, 3')
    a('s_cbranch_scc1 L_init_done')
    a('s_lshl_b32 s59, s6, 9')
    a('v_lshlrev_b32 v11, 3, v0')
    a('v_add_u32 v11, s59, v11')
    a(f'buffer_store_dwordx2 v[16:17], v11, {SWS}, 0 offen sc1')
    a('s_lshl_b32 s59, s4, 11')
    a('s_lshl_b32 s61, s5, 6')
    a('s_add_u32 s59, s59, s61')
    a(f's_add_u32 s59, s59, {YOFF}')
    a('v_lshlrev_b32 v12, 2, v0')
    a('v_add_u32 v12, s59, v12')
    a('s_mov_b64 exec, 0xffff')
    a(f'buffer_store_dword v16, v12, {SWS}, 0 offen sc1')
    a('s_lshl_b32 s42, s6, 7')
    a(f's_add_u32 s42, s42, {PML}')
    a('s_mov_b64 exec, 1')
    a(f'buffer_store_dwordx2 v[16:17], v10, {SWS}, s42 offen sc1')
    a('s_waitcnt vmcnt(0)')
    a(f'buffer_atomic_add v18, v10, {SDBG}, 0 offen sc1')
    a('s_mov_b64 exec, -1')
    a('s_branch L_init_done')

    a('L_h1_init:')
    a('s_mul_i32 s59, s4, 28')
    a('s_add_u32 s59, s59, s5')
    a('s_lshl_b32 s42, s59, 4')
    a('s_cmp_ge_u32 s5, 28')
    a('s_cbranch_scc1 L_h1_noffn')
    a('v_lshlrev_b32 v11, 1, v0')
    a(f's_add_u32 s59, s42, {GOFF}')
    a('v_add_u32 v11, s59, v11')
    a('s_mov_b64 exec, 0x55')
    a(f'buffer_store_dword v16, v11, {SWS}, 0 offen sc1')
    a('s_mov_b64 exec, -1')
    a('s_movk_i32 s59, 3584')
    a('v_mul_lo_u32 v12, v0, s59')
    for i in range(8):
        a(f's_mov_b32 m0, {W1+i*1024}')
        a(f's_add_u32 s61, s42, {i*64*3584}')
        a(f'buffer_load_dwordx4 v12, {SW1}, s61 offen {wpol} lds')
    a('v_and_b32 v12, 7, v0')
    a('v_lshlrev_b32 v12, 1, v12')
    a('v_lshl_add_u32 v12, v15, 11, v12')
    a('v_bfe_u32 v19, v0, 3, 1')
    a('v_lshl_add_u32 v12, v19, 7, v12')
    a('s_waitcnt vmcnt(0)')
    for t in range(8):
        for j in range(8):
            a(f'ds_read_u16 v{20+j}, v12 offset:{W1+(16*t+j)*16}')
        a('s_waitcnt lgkmcnt(0)')
        for k in range(4):
            a(f'v_lshl_or_b32 v{WXF+4*t+k}, v{21+2*k}, 16, v{20+2*k}')
    a('L_h1_noffn:')
    a('s_mov_b64 exec, 1')
    a(f'buffer_atomic_add v18, v10, {SDBG}, 0 offen sc1')
    a('s_mov_b64 exec, -1')
    a('s_branch L_init_done')

    a('L_h2_init:')
    a('s_lshl_b32 s42, s6, 2')
    a('v_lshlrev_b32 v12, 10, v0')
    for i in range(28):
        a(f's_mov_b32 m0, {W2+i*256}')
        a(f's_add_u32 s61, s42, {i*65536}')
        a(f'buffer_load_dword v12, {SW2}, s61 offen {wpol} lds')
    a('v_bfe_u32 v19, v0, 1, 3')
    a('v_mul_u32_u24 v12, 896, v19')
    a('v_lshl_add_u32 v12, v15, 5, v12')
    a('v_and_b32 v19, 1, v0')
    a('v_lshl_add_u32 v12, v19, 1, v12')
    a('v_and_b32 v19, 7, v0')
    a('v_mul_u32_u24 v11, 448, v19')
    a('v_lshl_add_u32 v11, v15, 4, v11')
    a(f'v_add_u32 v11, {GOFF}, v11')
    a('s_waitcnt vmcnt(0)')
    for t in range(7):
        for j in range(8):
            a(f'ds_read_u16 v{20+j}, v12 offset:{W2+(32*t+j)*4}')
        a('s_waitcnt lgkmcnt(0)')
        for k in range(4):
            a(f'v_lshl_or_b32 v{WXF+4*t+k}, v{21+2*k}, 16, v{20+2*k}')

    a('L_init_done:')
    a('s_lshl_b32 s59, s4, 19')
    a('s_lshl_b32 s61, s58, 17')
    a('s_add_u32 s59, s59, s61')
    a('s_lshl_b32 s61, s5, 5')
    a('s_add_u32 s59, s59, s61')
    a('v_lshrrev_b32 v19, 1, v0')
    a('v_lshlrev_b32 v19, 10, v19')
    a('v_and_b32 v20, 1, v0')
    a('v_lshl_add_u32 v19, v20, 4, v19')
    a('s_lshl_b32 s43, s58, 12')
    a(f's_add_u32 s43, s43, {WO}')
    for i in range(4):
        a(f's_add_u32 m0, s43, {i*1024}')
        a(f's_add_u32 s61, s59, {i*32768}')
        a(f'buffer_load_dwordx4 v19, {SWO}, s61 offen {wpol} lds')
    a('s_lshl_b32 s59, s58, 8')
    a('v_lshlrev_b32 v9, 3, v13')
    a('v_lshl_add_u32 v9, v14, 2, v9')
    a('v_add_u32 v9, s59, v9')
    a(f'buffer_load_dword v8, v9, {SX}, 0 offen')
    a(f'v_add_u32 v3, {OB}, v9')
    a(f'v_add_u32 v9, {HB}, v9')
    a('v_lshlrev_b32 v4, 4, v15')
    a(f's_add_u32 s61, s59, {OB}')
    a('v_add_u32 v4, s61, v4')
    a('s_lshl_b32 s59, s4, 2')
    a('s_add_u32 s59, s59, s58')
    a('s_lshl_b32 s61, s59, 12')
    a('v_lshlrev_b32 v1, 4, v0')
    a('v_add_u32 v1, s61, v1')
    a('v_and_b32 v2, 7, v0')
    a('v_xor_b32 v2, v2, v14')
    a('v_lshlrev_b32 v2, 7, v2')
    a('s_lshl_b32 s61, s59, 10')
    a(f's_add_u32 s61, s61, {PML}')
    a('v_add_u32 v2, s61, v2')
    a('v_and_b32 v20, 15, v0')
    a('v_lshlrev_b32 v5, 2, v20')
    a('s_lshl_b32 s61, s58, 6')
    a('v_add_u32 v5, s61, v5')
    a('v_lshlrev_b32 v6, 4, v13')
    a('v_lshl_add_u32 v6, v14, 11, v6')
    a('s_lshl_b32 s61, s58, 9')
    a(f's_add_u32 s61, s61, {YOFF}')
    a('v_add_u32 v6, s61, v6')
    a('v_lshlrev_b32 v19, 1, v20')
    a('v_lshl_add_u32 v19, v15, 8, v19')
    a('v_add_u32 v19, s43, v19')
    a('s_waitcnt vmcnt(0)')
    a('v_lshlrev_b32 v7, 16, v8')
    a('v_and_b32 v8, 0xffff0000, v8')
    for t in range(4):
        for j in range(8):
            a(f'ds_read_u16 v{20+j}, v19 offset:{(32*t+j)*32}')
        a('s_waitcnt lgkmcnt(0)')
        for k in range(4):
            a(f'v_lshl_or_b32 v{WOF+4*t+k}, v{21+2*k}, 16, v{20+2*k}')
    a('s_movk_i32 s59, 0x1000')
    a('s_movk_i32 s60, 0x2000')
    a('s_movk_i32 s61, 0x3000')
    a('s_cmp_lg_u32 s58, 0')
    a('s_cbranch_scc1 L_wait_stream')
    a('L_ready:')
    a(f'buffer_load_dword v16, v10, {SDBG}, 0 offen sc1')
    a('s_waitcnt vmcnt(0)')
    a('v_cmp_gt_u32 vcc, 0x200, v16')
    a('s_cbranch_vccz L_wait_stream')
    a('s_sleep 32')
    a('s_sub_u32 s63, s63, 1')
    a('s_cbranch_scc0 L_ready')
    a('L_wait_stream:')
    stamp(3)
    a('s_barrier')
    stamp(4)
    a('s_cmp_lg_u32 s58, 0')
    a('s_cbranch_scc1 L_st1')
    a('v_lshlrev_b32 v13, 3, v0')
    a(f'ds_read_b128 v[16:19], v10 offset:{PARTML}')
    a(f'ds_read_b128 v[20:23], v10 offset:{PARTML+16}')
    for w in range(4):
        a(f'ds_read_b64 v[{24+2*w}:{25+2*w}], v13 offset:{PART+512*w}')
    a('s_waitcnt lgkmcnt(4)')
    a('v_min3_f32 v33, v17, v19, v21')
    a('v_min_f32 v33, v33, v23')
    for w in range(4):
        a(f'v_sub_f32 v{17+2*w}, v33, v{17+2*w}')
    for w in range(4):
        a(f'v_exp_f32 v{17+2*w}, v{17+2*w}')
    a('s_waitcnt lgkmcnt(0)')
    a('v_mul_f32 v34, v17, v24')
    a('v_mul_f32 v35, v17, v25')
    a('v_mul_f32 v32, v17, v16')
    for w in range(1, 4):
        a(f'v_fmac_f32 v34, v{17+2*w}, v{24+2*w}')
        a(f'v_fmac_f32 v35, v{17+2*w}, v{25+2*w}')
        a(f'v_fmac_f32 v32, v{17+2*w}, v{16+2*w}')
    for r in (34, 35, 32, 33):
        a(f'v_min_u32 v{r}, -2, v{r}')
    a(f'buffer_store_dwordx2 v[34:35], v11, {SWS}, 0 offen sc1')
    a('s_mov_b64 exec, 1')
    a(f'buffer_store_dwordx2 v[32:33], v10, {SWS}, s42 offen sc1')
    a('s_mov_b64 exec, -1')
    stamp(5)
    a('L_st1:')
    a(f'buffer_load_dwordx2 v[32:33], v2, {SWS}, 0 offen sc1')
    for i in range(4):
        a(f'buffer_load_dwordx4 {vr(16+4*i,4)}, v1, {SWS}, 0 offen offset:{1024*i} sc1')
    a('s_waitcnt vmcnt(0)')
    check_poison(range(16, 34), 34)
    retry('L_st1')
    stamp(6)
    a(f'v_min_f32_dpp v34, v33, v33 quad_perm:[1,0,3,2] {DPP}')
    a(f'v_min_f32_dpp v34, v34, v34 quad_perm:[2,3,0,1] {DPP}')
    a(f'v_min_f32_dpp v34, v34, v34 row_half_mirror {DPP}')
    a('v_sub_f32 v33, v34, v33')
    a('v_exp_f32 v33, v33')
    a('v_mul_f32 v32, v32, v33')
    a(f'v_add_f32_dpp v32, v32, v32 quad_perm:[1,0,3,2] {DPP}')
    for r in range(4):
        a(f'v_mul_f32_dpp v{36+r}, v33, v{16+r} row_newbcast:0 {DPP}')
    a(f'v_add_f32_dpp v32, v32, v32 quad_perm:[2,3,0,1] {DPP}')
    for r in range(4):
        a(f'v_fmac_f32_dpp v{36+r}, v33, v{20+r} row_newbcast:2 {DPP}')
    a(f'v_add_f32_dpp v32, v32, v32 row_half_mirror {DPP}')
    for r in range(4):
        a(f'v_fmac_f32_dpp v{36+r}, v33, v{24+r} row_newbcast:4 {DPP}')
    a('v_rcp_f32 v32, v32')
    for r in range(4):
        a(f'v_fmac_f32_dpp v{36+r}, v33, v{28+r} row_newbcast:6 {DPP}')
    a('v_permlane32_swap_b32 v36, v38')
    a('v_permlane32_swap_b32 v37, v39')
    a('v_add_f32 v36, v36, v38')
    a('v_add_f32 v37, v37, v39')
    a('v_mul_f32 v36, v36, v32')
    a('v_mul_f32 v37, v37, v32')
    a('v_cvt_pk_bf16_f32 v36, v36, v37')
    a('ds_write_b32 v3, v36')
    a('s_waitcnt lgkmcnt(0)')
    for t in range(4):
        a(f'ds_read_b128 {vr(16+4*t,4)}, v4 offset:{64*t}')
    for t in range(4):
        a(f's_waitcnt lgkmcnt({3-t})')
        a(f'v_mfma_f32_16x16x32_bf16 v[32:35], {vr(16+4*t,4)}, {vr(WOF+4*t,4)}, {"0" if t == 0 else "v[32:35]"}')
    a('s_mov_b64 exec, 0xffff')
    a(f'ds_write_b32 v5, v32 offset:{YB}')
    a('s_mov_b64 exec, -1')
    a('s_waitcnt lgkmcnt(0)')
    a('s_barrier')
    a('s_cmp_lg_u32 s58, 0')
    a('s_cbranch_scc1 L_st2')
    for w in range(4):
        a(f'ds_read_b32 v{16+w}, v5 offset:{YB+64*w}')
    a('s_waitcnt lgkmcnt(2)')
    a('v_add_f32 v16, v16, v17')
    a('s_waitcnt lgkmcnt(0)')
    a('v_add_f32 v18, v18, v19')
    a('v_add_f32 v16, v16, v18')
    a('v_min_u32 v16, -2, v16')
    a('s_mov_b64 exec, 0xffff')
    a(f'buffer_store_dword v16, v12, {SWS}, 0 offen sc1')
    a('s_mov_b64 exec, -1')
    stamp(7)
    a('L_st2:')
    for i, so in enumerate(('0', 's59', 's60', 's61')):
        a(f'buffer_load_dwordx4 {vr(16+4*i,4)}, v6, {SWS}, {so} offen sc1')
    a('s_waitcnt vmcnt(0)')
    check_poison(range(16, 32), 34)
    retry('L_st2')
    stamp(8)
    for r in range(4):
        a(f'v_add_f32 v{16+r}, v{16+r}, v{20+r}')
        a(f'v_add_f32 v{24+r}, v{24+r}, v{28+r}')
    for r in range(4):
        a(f'v_add_f32 v{16+r}, v{16+r}, v{24+r}')
    a('v_permlane32_swap_b32 v16, v18')
    a('v_permlane32_swap_b32 v17, v19')
    a('v_add_f32 v16, v16, v18')
    a('v_add_f32 v17, v17, v19')
    a('v_cvt_pk_bf16_f32 v16, 0, v16')
    a('v_cvt_pk_bf16_f32 v17, 0, v17')
    a('v_add_f32 v16, v16, v7')
    a('v_add_f32 v17, v17, v8')
    a('v_cvt_pk_bf16_f32 v16, v16, v17')
    a('ds_write_b32 v9, v16')
    a('s_waitcnt lgkmcnt(0)')
    a('s_barrier')
    a('s_cmp_eq_u32 s58, 2')
    a('s_cbranch_scc1 L_st3')
    a('s_cmp_lg_u32 s58, 1')
    a('s_cbranch_scc1 L_hend')
    a('s_cmp_ge_u32 s5, 28')
    a('s_cbranch_scc1 L_hend')
    a('v_lshlrev_b32 v13, 4, v0')
    a(f'ds_read_b128 v[96:99], v13 offset:{HB}')
    a('s_waitcnt lgkmcnt(0)')
    layernorm(96, 100, 108, 62, False)
    for t in range(8):
        a(f'v_mfma_f32_16x16x32_bf16 {vr(16+4*t,4)}, v[96:99], {vr(WXF+4*t,4)}, 0')
    for rg in range(4):
        for hf in range(2):
            a(f'v_add_f32_dpp v13, v{16+8*rg+hf}, v{16+8*rg+4+2+hf} quad_perm:[0,1,2,3] row_mask:{1<<rg:#x} bank_mask:{(3, 12)[hf]:#x}')
    a(f'v_add_f32_dpp v13, v13, v13 row_ror:8 {DPP}')
    a('v_mov_b32 v14, v13')
    a('v_permlane16_swap_b32 v13, v14')
    a('v_add_f32 v13, v13, v14')
    a('v_mov_b32 v14, v13')
    a('v_permlane32_swap_b32 v13, v14')
    a('v_add_f32 v13, v13, v14')
    a('v_cvt_pk_bf16_f32 v13, 0, v13')
    a(f'v_mul_f32 v14, {LOG2E | 0x80000000:#x}, v13')
    a('v_exp_f32 v14, v14')
    a('v_add_f32 v14, 1.0, v14')
    a('v_rcp_f32 v14, v14')
    a('v_mul_f32 v13, v13, v14')
    a(f'v_mov_b32_dpp v14, v13 quad_perm:[1,0,3,2] {DPP}')
    a('v_cvt_pk_bf16_f32 v13, v13, v14')
    a('v_min_u32 v13, -2, v13')
    a('s_mov_b64 exec, 0x55')
    a(f'buffer_store_dword v13, v11, {SWS}, 0 offen sc1')
    stamp(9)
    a('s_branch L_hend')
    a('L_st3:')
    a('v_mov_b32 v13, s42')
    a(f'ds_read_b32 v13, v13 offset:{HB}')
    a('v_and_b32 v14, 1, v0')
    a('v_lshlrev_b32 v14, 4, v14')
    a('v_sub_u32 v14, 16, v14')
    a('s_mov_b32 s44, 0xcccccccc'); a('s_mov_b32 s45, 0xcccccccc')
    a('s_mov_b32 s46, 0xf0f0f0f0'); a('s_mov_b32 s47, 0xf0f0f0f0')
    a('s_mov_b32 s48, 0xff0000ff'); a('s_mov_b32 s49, 0')
    a('s_waitcnt lgkmcnt(0)')
    a('v_lshlrev_b32 v13, v14, v13')
    a('v_and_b32 v13, 0xffff0000, v13')
    a('L_st3p:')
    for t in range(7):
        a(f'buffer_load_dwordx4 {vr(96+4*t,4)}, v11, {SWS}, 0 offen offset:{64*t} sc1')
    a('s_waitcnt vmcnt(0)')
    check_poison(range(96, 124), 34)
    retry('L_st3p')
    stamp(9)
    for t in range(7):
        a(f'v_mfma_f32_16x16x32_bf16 v[16:19], {vr(96+4*t,4)}, {vr(WXF+4*t,4)}, {"0" if t == 0 else "v[16:19]"}')
    a('v_cndmask_b32 v16, v16, v17, s[44:45]')
    a('v_cndmask_b32 v18, v18, v19, s[44:45]')
    a('v_cndmask_b32 v16, v16, v18, s[46:47]')
    a('v_cndmask_b32 v16, 0, v16, s[48:49]')
    for r in (2, 4, 8):
        a(f'v_add_f32_dpp v16, v16, v16 row_ror:{r} {DPP}')
    a('v_mov_b32 v17, v16')
    a('v_permlane16_swap_b32 v16, v17')
    a('v_add_f32 v16, v16, v17')
    a('v_cvt_pk_bf16_f32 v16, 0, v16')
    a('v_add_f32 v16, v16, v13')
    a(f'v_mov_b32_dpp v17, v16 quad_perm:[1,0,3,2] {DPP}')
    a('v_cvt_pk_bf16_f32 v16, v16, v17')
    a('s_mov_b64 exec, 1')
    a(f'buffer_store_dword v16, v10, {SOUT}, s42 offen')
    stamp(10)
    a('L_hend:')
    dump_stamps(11, SWS)
    a('L_end:')
    a('s_endpgm')

    ref = open('cdna_kernels/' + NAME + '.s.ref').read().split('\n')
    head = [l for l in ref if l.startswith(';') and '@launch' not in l and 'Override launch' not in l and 'grid=ceil' not in l]
    out = '\n'.join(head) + '\n'
    out += f'; @launch grid=(256,1,1) block=(512,1,1) lds={lds}\n'
    out += '.amdgcn_target "amdgcn-amd-amdhsa--gfx950"\n.text\n'
    out += f'.globl {KERN}\n.p2align 8\n.type {KERN},@function\n'
    out += a.text()
    nv = max(RING + 4 * R, 124)
    nv = (nv + 3) // 4 * 4
    out += '.section .rodata,"a"\n.p2align 6\n'
    out += f'.amdhsa_kernel {KERN}\n'
    out += f'  .amdhsa_next_free_vgpr {nv}\n  .amdhsa_next_free_sgpr {88 if diag else 64}\n  .amdhsa_accum_offset {nv}\n'
    out += '  .amdhsa_group_segment_fixed_size 0\n  .amdhsa_kernarg_size 88\n  .amdhsa_user_sgpr_count 2\n'
    out += '  .amdhsa_user_sgpr_kernarg_segment_ptr 1\n  .amdhsa_system_sgpr_workgroup_id_x 1\n'
    out += '  .amdhsa_float_denorm_mode_32 3\n'
    out += '.end_amdhsa_kernel\n'
    return out


if __name__ == '__main__':
    kw = eval('dict(' + (sys.argv[2] if len(sys.argv) > 2 else '') + ')')
    open(sys.argv[1], 'w').write(gen(**kw))
```

```python
import sys, os
sys.path.insert(0, os.path.dirname(os.path.abspath(__file__)))
from asmlib import Asm

NAME = 'sequential_preLN__mha_block_cached__dense_activation_silu__decode'
KERN = NAME + '_kernel'

XT, QP, PART, PARTML, FLAGS, QT, OB, YB, HB, WO, W1, W2, LDS_END = (
    0, 2048, 4096, 12288, 12416, 12544, 13568, 14592, 14848, 16384, 32768, 40960, 48128)
F_CNT, F_QRDY, F_INIT = FLAGS, FLAGS + 12, FLAGS + 16
PO, PML, YOFF, GOFF, QG, WS_USED, DIAG, WS_DIAG = 0, 0x80000, 0xA0000, 0xA4000, 0xA8000, 0xB4000, 0xC0000, 0xE0000

LOG2E = 0x3fb8aa3b
SCALE = 0x3db504f3
DPP = 'row_mask:0xf bank_mask:0xf'


def gen(N=5, AUX=6, il=8, hx=1 << 20, rev=1, diag=False, wpol='nt', kvpol='nt', catch=3, lds=LDS_END, slp=0):
    a = Asm()
    vr = lambda b, n: f'v[{b}:{b+n-1}]'
    stamps = {'n': 0}

    def stamp(i):
        if diag:
            a(f's_memrealtime s[{64+2*i}:{65+2*i}]')
            a('s_waitcnt lgkmcnt(0)')

    def dump_stamps(n, srd):
        if not diag:
            return
        a('s_mov_b64 exec, 1')
        a('s_lshl_b32 s62, s2, 3')
        a('s_add_u32 s62, s62, s3')
        a('s_lshl_b32 s62, s62, 6')
        a(f's_add_u32 s62, s62, {DIAG}')
        a('v_mov_b32 v1, s62')
        for i in range(n):
            a(f'v_mov_b32 v2, s{64+2*i}')
            a(f'buffer_store_dword v2, v1, {srd}, 0 offen offset:{4*i}')
            a('s_nop 1')
        a('s_getreg_b32 s62, hwreg(HW_REG_XCC_ID)')
        a('v_mov_b32 v2, s62')
        a(f'buffer_store_dword v2, v1, {srd}, 0 offen offset:60')
        a('s_waitcnt vmcnt(0)')

    def srd(d, lo, hi, size):
        a(f's_mov_b32 s{d}, s{lo}')
        a(f's_mov_b32 s{d+1}, s{hi}')
        a(f's_mov_b32 s{d+2}, {size}')
        a(f's_mov_b32 s{d+3}, 0x20000')

    def masks(M, t0, t1, t2):
        a(f'v_and_b32 v{t0}, 1, v0')
        a(f'v_cmp_eq_u32 vcc, 1, v{t0}')
        a(f'v_mov_b32 v{t1}, 0xffff')
        a(f'v_mov_b32 v{t2}, 0xffff0000')
        a(f'v_cndmask_b32 v{t1}, v{t1}, v{t2}, vcc')
        a(f'v_bfe_u32 v{t0}, v0, 1, 3')
        for i in range(4):
            a(f'v_cmp_eq_u32 vcc, {i}, v{t0}')
            a(f'v_cndmask_b32 v{M+i}, 0, v{t1}, vcc')

    def reduce64(t, s):
        for r in (8, 4, 2, 1):
            a(f'v_add_f32_dpp v{t}, v{t}, v{t} row_ror:{r} {DPP}')
        a(f'v_add_f32_dpp v{t}, v{t}, v{t} row_bcast:15 row_mask:0xa bank_mask:0xf')
        a(f'v_add_f32_dpp v{t}, v{t}, v{t} row_bcast:31 row_mask:0xc bank_mask:0xf')
        a(f'v_readlane_b32 s{s}, v{t}, 63')

    def layernorm(P, F, T, s, dup):
        for i in range(4):
            a(f'v_lshlrev_b32 v{F+2*i}, 16, v{P+i}')
            a(f'v_and_b32 v{F+2*i+1}, 0xffff0000, v{P+i}')
        a(f'v_add_f32 v{T}, v{F}, v{F+1}')
        a(f'v_add_f32 v{T+1}, v{F+2}, v{F+3}')
        a(f'v_add_f32 v{T+2}, v{F+4}, v{F+5}')
        a(f'v_add_f32 v{T+3}, v{F+6}, v{F+7}')
        a(f'v_add_f32 v{T}, v{T}, v{T+1}')
        a(f'v_add_f32 v{T+2}, v{T+2}, v{T+3}')
        a(f'v_add_f32 v{T}, v{T}, v{T+2}')
        a(f'v_mov_b32 v{T+3}, 0x3b000000')
        reduce64(T, s)
        a(f'v_mul_f32 v{T+1}, s{s}, v{T+3}')
        for i in range(8):
            a(f'v_sub_f32 v{T+2}, v{F+i}, v{T+1}')
            if i == 0:
                a(f'v_mul_f32 v{T}, v{T+2}, v{T+2}')
            else:
                a(f'v_fmac_f32 v{T}, v{T+2}, v{T+2}')
        a(f'v_cvt_pk_bf16_f32 v{T+1}, 0, v{T+1}')
        reduce64(T, s)
        for i in range(8):
            a(f'v_sub_f32 v{F+i}, v{F+i}, v{T+1}')
        a(f'v_mul_f32 v{T}, s{s}, v{T+3}')
        a(f'v_cvt_pk_bf16_f32 v{T}, 0, v{T}')
        a(f'v_add_f32 v{T}, 0x3727c5ac, v{T}')
        a(f'v_cvt_pk_bf16_f32 v{T}, 0, v{T}')
        a(f'v_sqrt_f32 v{T}, v{T}')
        for i in range(4):
            a(f'v_cvt_pk_bf16_f32 v{F+i}, 0, v{F+i}')
        a(f'v_cvt_pk_bf16_f32 v{T}, 0, v{T}')
        a(f'v_rcp_f32 v{T}, v{T}')
        for i in range(4, 8):
            a(f'v_cvt_pk_bf16_f32 v{F+i}, 0, v{F+i}')
        for i in range(8):
            a(f'v_mul_f32 v{F+i}, v{F+i}, v{T}')
        if dup:
            for i in range(8):
                a(f'v_cvt_pk_bf16_f32 v{F+i}, v{F+i}, v{F+i}')
        else:
            for i in range(4):
                a(f'v_cvt_pk_bf16_f32 v{P+i}, v{F+2*i}, v{F+2*i+1}')

    def check_poison(regs, t):
        regs = list(regs)
        a(f'v_max3_u32 v{t}, v{regs[0]}, v{regs[1]}, v{regs[2]}')
        rest = regs[3:]
        while len(rest) >= 2:
            a(f'v_max3_u32 v{t}, v{t}, v{rest[0]}, v{rest[1]}')
            rest = rest[2:]
        if rest:
            a(f'v_max_u32 v{t}, v{t}, v{rest[0]}')
        a(f'v_cmp_eq_u32 vcc, -1, v{t}')

    def retry(lbl):
        a(f's_cbranch_vccz {lbl}_ok')
        if slp:
            a(f's_sleep {slp}')
        a('s_sub_u32 s63, s63, 1')
        a(f's_cbranch_scc0 {lbl}')
        a(f'{lbl}_ok:')

    def head_of(dst, p):
        if isinstance(p, int):
            a(f's_add_u32 s{dst}, s4, {8 * (3 - p if rev else p)}')
        else:
            if rev:
                a(f's_sub_u32 s{dst}, 3, {p}')
                a(f's_lshl_b32 s{dst}, s{dst}, 3')
            else:
                a(f's_lshl_b32 s{dst}, {p}, 3')
            a(f's_add_u32 s{dst}, s{dst}, s4')

    a(f'{KERN}:')
    stamp(0)
    a('s_cmp_ge_u32 s2, 256')
    a('s_cbranch_scc1 L_end')
    a('v_lshrrev_b32 v1, 6, v0')
    a('v_readfirstlane_b32 s3, v1')
    a('v_and_b32 v0, 63, v0')
    a('s_and_b32 s4, s2, 7')
    a('s_lshr_b32 s5, s2, 3')
    a('s_lshl_b32 s6, s4, 5')
    a('s_add_u32 s6, s6, s5')
    head_of(7, 0)
    a('s_cmp_ge_u32 s3, 4')
    a('s_cbranch_scc1 L_helper')

    Q, MK, ACC, A, PA, T0, T1, U, T, S, LS, MN, AUXR, RING = 4, 8, 12, 16, 20, 24, 25, 26, 27, 28, 36, 37, 40, 64
    assert AUX <= 6
    slot = lambda k: AUXR + 4 * k if k < AUX else RING + 4 * (k % 16)
    a('s_load_dwordx4 s[40:43], s[0:1], 8')
    if diag:
        a('s_load_dwordx2 s[36:37], s[0:1], 80')
    a('v_lshlrev_b32 v1, 4, v0')
    a('s_lshl_b32 s21, s3, 10')
    a(f's_mul_i32 s16, s5, {il*4096}')
    a('s_add_u32 s21, s21, s16')
    a('v_add_u32 v1, s21, v1')
    a(f's_mul_i32 s18, s4, {hx}')
    a('s_mov_b32 s16, 0')
    a('s_lshl_b32 s21, s7, 24')
    a('s_mov_b32 s10, 0x1000000'); a('s_mov_b32 s11, 0x20000')
    a('s_mov_b32 s14, 0x1000000')
    a('s_waitcnt lgkmcnt(0)')
    a('s_add_u32 s8, s40, s21'); a('s_addc_u32 s9, s41, 0')
    st = {'p': 0, 'landed': -1}

    def issue(loop=False):
        k = st['p']
        if loop and k % 16 == 0:
            a('s_cmp_eq_u32 s19, 1')
            a('s_cselect_b32 s8, s12, s8')
            a('s_cselect_b32 s9, s13, s9')
            a('s_cselect_b32 s10, s14, s10')
            a('s_cselect_b32 s16, 0, s16')
        a('s_xor_b32 s17, s16, s18')
        a(f's_add_u32 s16, s16, {4096 if k % il != il - 1 else 4096 + 31 * il * 4096}')
        a(f'buffer_load_dwordx4 {vr(slot(k),4)}, v1, s[8:11], s17 offen {kvpol}')
        st['p'] += 1

    def wait_landed(e):
        if st['landed'] < e:
            a(f's_waitcnt vmcnt({st["p"]-1-e})')
            st['landed'] = e

    def shift_s(last):
        for i in range(7):
            a(f'v_mov_b32 v{S+i}, v{S+i+1}')
        if last is not None:
            a(f'v_cvt_pk_bf16_f32 v{S+7}, 0, v{last}')

    def k_step(e):
        wait_landed(e)
        s, i = slot(e), e % 16
        d = PA + (i & 3)
        a(f'v_dot2_f32_bf16 v{d}, v{s}, v{Q}, 0')
        for r in range(1, 4):
            a(f'v_dot2_f32_bf16 v{d}, v{s+r}, v{Q+r}, v{d}')
        if i & 3 == 3:
            a(f'v_add_f32_dpp v{T0}, v{PA}, v{PA} row_mirror row_mask:0xf bank_mask:0x3')
            a(f'v_add_f32_dpp v{T1}, v{PA+2}, v{PA+2} row_mirror row_mask:0xf bank_mask:0x3')
            a(f'v_add_f32_dpp v{T0}, v{PA+1}, v{PA+1} row_mirror row_mask:0xf bank_mask:0xc')
            a(f'v_add_f32_dpp v{T1}, v{PA+3}, v{PA+3} row_mirror row_mask:0xf bank_mask:0xc')
            a(f'v_add_f32_dpp v{U}, v{T0}, v{T0} row_half_mirror row_mask:0xf bank_mask:0x5')
            a(f'v_add_f32_dpp v{U}, v{T1}, v{T1} row_half_mirror row_mask:0xf bank_mask:0xa')
            a(f'v_add_f32_dpp v{U}, v{U}, v{U} quad_perm:[2,3,0,1] {DPP}')
            g = i >> 2
            if g == 0:
                a(f'v_add_f32_dpp v{T}, v{U}, v{U} quad_perm:[1,0,3,2] {DPP}')
            else:
                a(f'v_add_f32_dpp v{U}, v{U}, v{U} quad_perm:[1,0,3,2] {DPP}')
                a(f'v_cndmask_b32 v{T}, v{T}, v{U}, s[{20+2*g}:{21+2*g}]')
        if i == 15:
            a(f'v_cvt_pk_bf16_f32 v{T}, 0, v{T}')
            a(f'v_mul_f32 v{T}, {SCALE:#x}, v{T}')
            shift_s(T)

    def v_step(e):
        wait_landed(e)
        s, i = slot(e), e % 16
        ln = 4 * (0, 2, 1, 3)[i & 3] + (i >> 2)
        for r in range(4):
            a(f'v_and_b32_dpp v{A+r}, v{S}, v{MK+r} row_newbcast:{ln} {DPP}')
        a(f'v_mfma_f32_16x16x32_bf16 {vr(ACC,4)}, {vr(A,4)}, {vr(s,4)}, {vr(ACC,4)}')
        if i == 15:
            shift_s(None)

    def phase_stamp():
        if diag:
            for k in range(3, 10):
                a(f's_mov_b32 s{64+2*k}, s{66+2*k}')
            stamp(10)

    for k in range(AUX + 16):
        if k >= N:
            wait_landed(k - N)
        issue()
        if k == N - 1:
            a('s_mov_b32 s28, s8'); a('s_mov_b32 s29, s9')
            a('s_add_u32 s30, s42, s21'); a('s_addc_u32 s31, s43, 0')
            a('s_mov_b32 s12, s30'); a('s_mov_b32 s13, s31')
            a(f's_mov_b32 s20, {LOG2E:#x}')
            for g in range(1, 4):
                a(f's_mov_b32 s{20+2*g}, {0x11111111 << g:#x}'); a(f's_mov_b32 s{21+2*g}, {0x11111111 << g:#x}')
            a('s_mov_b32 s32, 0')
            if diag:
                a(f's_mov_b32 s38, {WS_DIAG}'); a('s_mov_b32 s39, 0x20000')
            masks(MK, 2, 3, 4)
            a('v_and_b32 v38, 15, v0')
            a('v_lshrrev_b32 v3, 4, v0')
            a('v_lshlrev_b32 v2, 5, v38')
            a('v_lshl_add_u32 v39, v3, 4, v2')
            a('s_lshl_b32 s21, s3, 9')
            a('v_add_u32 v39, s21, v39')
            a('v_lshlrev_b32 v38, 4, v38')
    stamp(1)
    a('s_barrier')
    stamp(2)
    for h, b in ((0, 12), (1, 20), (2, 28)):
        a(f'ds_read_b128 {vr(b,4)}, v2 offset:{QP+h*512}')
        a(f'ds_read_b128 {vr(b+4,4)}, v2 offset:{QP+h*512+16}')
    a('s_waitcnt lgkmcnt(2)')
    for i in range(8):
        a(f'v_add_f32 v{12+i}, v{12+i}, v{20+i}')
    a(f'ds_read_b128 v[20:23], v2 offset:{QP+1536}')
    a(f'ds_read_b128 v[24:27], v2 offset:{QP+1536+16}')
    a('s_waitcnt lgkmcnt(2)')
    for i in range(8):
        a(f'v_add_f32 v{12+i}, v{12+i}, v{28+i}')
    a('s_waitcnt lgkmcnt(0)')
    for i in range(8):
        a(f'v_add_f32 v{12+i}, v{12+i}, v{20+i}')
    for i in range(4):
        a(f'v_cvt_pk_bf16_f32 v{Q+i}, v{12+2*i}, v{13+2*i}')
    for e in range(32):
        if st['p'] - e <= N:
            wait_landed(e)
            issue()
            k_step(e)
        else:
            k_step(e)
            k = st['p']
            if (e + 1) % catch == 0 and k - 16 <= e and k - (e + 1) > N:
                wait_landed(k - N)
                issue()
    assert st['p'] == 32 + N
    a('s_mov_b32 s19, 6')
    a('L_kloop:')
    for e in range(32, 48):
        wait_landed(e)
        issue(True)
        k_step(e)
    a('s_sub_u32 s19, s19, 1')
    a('s_cmp_lg_u32 s19, 0')
    a('s_cbranch_scc1 L_kloop')
    phase_stamp()
    a(f'v_max3_f32 v2, v{S}, v{S+1}, v{S+2}')
    a(f'v_max3_f32 v3, v{S+3}, v{S+4}, v{S+5}')
    a(f'v_max3_f32 v2, v2, v{S+6}, v{S+7}')
    a('v_max_f32 v2, v2, v3')
    if rev:
        a('s_sub_u32 s28, s28, 0x8000000'); a('s_subb_u32 s29, s29, 0')
    else:
        a('s_add_u32 s28, s28, 0x8000000'); a('s_addc_u32 s29, s29, 0')
    a('s_cmp_eq_u32 s32, 3')
    a('s_cselect_b32 s12, s30, s28')
    a('s_cselect_b32 s13, s31, s29')
    a('s_cselect_b32 s14, 0, s14')
    for r in (8, 4, 2, 1):
        a(f'v_max_f32_dpp v2, v2, v2 row_ror:{r} {DPP}')
    a('v_max_f32_dpp v2, v2, v2 row_bcast:15 row_mask:0xa bank_mask:0xf')
    a('v_max_f32_dpp v2, v2, v2 row_bcast:31 row_mask:0xc bank_mask:0xf')
    a('v_readlane_b32 s21, v2, 63')
    a('v_mov_b32 v2, 0xff167699')
    a('v_max_f32 v2, s21, v2')
    a(f'v_mul_f32 v{MN}, {LOG2E | 0x80000000:#x}, v2')
    for i in range(8):
        a(f'v_fma_f32 v{S+i}, v{S+i}, s20, v{MN}')
    for i in range(8):
        a(f'v_exp_f32 v{S+i}, v{S+i}')
    for i in range(4):
        a(f'v_mov_b32 v{ACC+i}, 0')
    a(f'v_add_f32 v{LS}, v{S}, v{S+1}')
    a(f'v_add_f32 v2, v{S+2}, v{S+3}')
    a(f'v_add_f32 v3, v{S+4}, v{S+5}')
    a(f'v_add_f32 v{LS}, v{LS}, v2')
    a(f'v_add_f32 v2, v{S+6}, v{S+7}')
    a(f'v_add_f32 v{LS}, v{LS}, v3')
    a(f'v_add_f32 v{LS}, v{LS}, v2')
    for i in range(8):
        a(f'v_cvt_pk_bf16_f32 v{S+i}, v{S+i}, v{S+i}')
    a('s_mov_b32 s19, 8')
    a('L_vloop:')
    for e in range(48, 64):
        wait_landed(e)
        issue(True)
        v_step(e)
    a('s_sub_u32 s19, s19, 1')
    a('s_cmp_lg_u32 s19, 0')
    a('s_cbranch_scc1 L_vloop')
    phase_stamp()
    for r in (8, 4, 2, 1):
        a(f'v_add_f32_dpp v{LS}, v{LS}, v{LS} row_ror:{r} {DPP}')
    a(f'v_add_f32_dpp v{LS}, v{LS}, v{LS} row_bcast:15 row_mask:0xa bank_mask:0xf')
    a('s_lshl_b32 s21, s32, 2')
    a('s_add_u32 s33, s21, s3')
    a(f'v_add_f32_dpp v{LS}, v{LS}, v{LS} row_bcast:31 row_mask:0xc bank_mask:0xf')
    a('s_lshl_b32 s33, s33, 3')
    a('v_mov_b32 v3, s33')
    a('v_mov_b32 v2, s21')
    a('s_mov_b32 exec_hi, 0')
    a(f'ds_write_b128 v39, {vr(ACC,4)} offset:{PART}')
    a('s_mov_b32 exec_lo, 0')
    a('s_mov_b32 exec_hi, 0x80000000')
    a(f'ds_write_b64 v3, v[{LS}:{MN}] offset:{PARTML}')
    a('s_cmp_eq_u32 s32, 3')
    a('s_cbranch_scc1 L_sdone')
    a('s_waitcnt lgkmcnt(0)')
    a('v_mov_b32 v3, 1')
    a(f'ds_add_u32 v2, v3 offset:{F_CNT}')
    a('s_mov_b64 exec, -1')
    a('s_add_u32 s32, s32, 1')
    a('v_add_u32 v39, 0x800, v39')
    a('v_add_u32 v38, 0x100, v38')
    if rev:
        a('s_sub_u32 s30, s30, 0x8000000'); a('s_subb_u32 s31, s31, 0')
    else:
        a('s_add_u32 s30, s30, 0x8000000'); a('s_addc_u32 s31, s31, 0')
    a('s_mov_b32 s12, s30'); a('s_mov_b32 s13, s31')
    a('s_waitcnt lgkmcnt(0)')
    a('v_mov_b32 v3, 0')
    a('s_mov_b32 s21, 0x400000')
    a('L_qwait:')
    a(f'ds_read_b32 v2, v3 offset:{F_QRDY}')
    a(f'ds_read_b128 {vr(Q,4)}, v38 offset:{QT}')
    a('s_waitcnt lgkmcnt(0)')
    a('v_cmp_eq_u32 vcc, 1, v2')
    a('s_mov_b32 s19, 8')
    a('s_cbranch_vccnz L_kloop')
    a('s_sub_u32 s21, s21, 1')
    a('s_cbranch_scc0 L_qwait')
    a('s_branch L_kloop')
    a('L_sdone:')
    a('s_waitcnt lgkmcnt(0)')
    a('s_barrier')
    dump_stamps(11, 's[36:39]')
    a('s_endpgm')

    HR = 28
    SX, SWQ, SWO, SW1, SW2, SOUT, SDBG, SWS = ('s[%d:%d]' % (b, b + 3) for b in (8, 12, 16, 20, 24, 28, 32, 36))
    a('L_helper:')
    a('s_load_dwordx2 s[40:41], s[0:1], 0')
    a('s_load_dwordx4 s[44:47], s[0:1], 24')
    a('s_load_dwordx4 s[48:51], s[0:1], 48')
    a('s_load_dwordx4 s[52:55], s[0:1], 64')
    a('s_load_dwordx2 s[56:57], s[0:1], 80')
    a('s_sub_u32 s58, s3, 4')
    a('v_lshlrev_b32 v1, 4, v0')
    a('v_lshrrev_b32 v15, 4, v0')
    a('v_and_b32 v14, 15, v0')
    a('v_lshlrev_b32 v14, 4, v14')
    a('v_lshl_add_u32 v14, v15, 15, v14')
    a('v_lshlrev_b32 v15, 4, v15')
    a('s_lshl_b32 s59, s58, 9')
    a('v_add_u32 v15, s59, v15')
    a('s_lshl_b32 s59, s58, 20')
    a('s_lshl_b32 s60, s7, 8')
    a('s_add_u32 s59, s59, s60')
    a('s_and_b32 s60, s5, 7')
    a('s_mov_b32 s63, 0x100000')
    a('s_waitcnt lgkmcnt(0)')
    srd(8, 40, 41, 1024)
    srd(12, 44, 45, 512*4096*2)
    a(f'buffer_load_dwordx4 v[2:5], v1, {SX}, 0 offen')
    hp = {'p': 0}

    def wq_issue():
        t = hp['p']
        u, i = t >> 2, t & 3
        if i == 0:
            a(f's_add_u32 s61, s60, {u}')
            a('s_and_b32 s61, s61, 7')
            a('s_lshl_b32 s61, s61, 17')
            a('s_add_u32 s61, s61, s59')
        else:
            a('s_add_u32 s61, s61, 8192')
        a(f'buffer_load_dwordx4 {vr(HR+4*(t%24),4)}, v14, {SWQ}, s61 offen {wpol}')
        hp['p'] += 1

    def dup_read(u):
        a(f's_add_u32 s62, s60, {u}')
        a('s_and_b32 s62, s62, 7')
        a('s_lshl_b32 s62, s62, 6')
        a('v_add_u32 v1, s62, v15')
        a(f'ds_read_b128 {vr(16 if u % 2 == 0 else 24, 4)}, v1 offset:{XT}')

    def q_project():
        dup_read(0)
        for u in range(8):
            if u < 7:
                dup_read(u + 1)
                a('s_waitcnt lgkmcnt(1)')
            else:
                a('s_waitcnt lgkmcnt(0)')
            D = 16 if u % 2 == 0 else 24
            for i in range(4):
                t = 4 * u + i
                for k in range(4):
                    a(f'v_and_b32 v{20+k}, v{D+i}, v{6+k}')
                a(f's_waitcnt vmcnt({hp["p"]-1-t})')
                a(f'v_mfma_f32_16x16x32_bf16 v[10:13], v[20:23], {vr(HR+4*(t%24),4)}, {"0" if t == 0 else "v[10:13]"}')
                if hp['p'] < 32:
                    wq_issue()

    for t in range(24):
        wq_issue()
    srd(16, 46, 47, 4096*512*2)
    srd(20, 48, 49, 512*1792*2)
    srd(24, 50, 51, 1792*512*2)
    srd(28, 52, 53, 1024)
    srd(32, 54, 55, 256)
    srd(36, 56, 57, WS_DIAG if diag else WS_USED)
    masks(6, 10, 11, 12)
    a('v_mov_b32 v10, 0')
    a('v_and_b32 v11, 7, v0')
    a('v_lshlrev_b32 v11, 2, v11')
    a(f'ds_write_b32 v11, v10 offset:{FLAGS}')
    a('s_waitcnt vmcnt(24)')
    stamp(1)
    layernorm(2, 16, 24, 62, True)
    a('v_lshlrev_b32 v1, 5, v0')
    a(f'ds_write_b128 v1, v[16:19] offset:{XT}')
    a(f'ds_write_b128 v1, v[20:23] offset:{XT+16}')
    a('v_and_b32 v2, 15, v0')
    a('v_lshrrev_b32 v3, 4, v0')
    a('v_lshlrev_b32 v2, 5, v2')
    a('v_lshl_add_u32 v2, v3, 4, v2')
    a('s_lshl_b32 s62, s58, 9')
    a('v_add_u32 v2, s62, v2')
    a('s_waitcnt lgkmcnt(0)')
    q_project()
    a('s_mov_b32 exec_hi, 0')
    a(f'ds_write_b128 v2, v[10:13] offset:{QP}')
    a('s_mov_b64 exec, -1')
    a('s_waitcnt lgkmcnt(0)')
    stamp(2)
    a('s_barrier')

    WOF, WXF = 80, 96
    a('v_mov_b32 v16, -1')
    a('v_mov_b32 v17, -1')
    a('v_mov_b32 v18, 1')
    a('v_mov_b32 v10, 0')
    a('v_lshlrev_b32 v3, 3, v0')
    a('s_mul_i32 s52, s4, 3')
    a('s_add_u32 s52, s52, s5')
    a('s_lshl_b32 s52, s52, 11')
    a(f's_add_u32 s52, s52, {QG}')
    a('s_cmp_ge_u32 s5, 3')
    a('s_cbranch_scc1 L_noqg1')
    a('s_lshl_b32 s61, s58, 9')
    a('s_add_u32 s61, s61, s52')
    a(f'buffer_store_dwordx2 v[16:17], v3, {SWS}, s61 offen sc1')
    a('L_noqg1:')

    def part_slots(p):
        head_of(53, p)
        a('s_lshl_b32 s53, s53, 5')
        a('s_add_u32 s53, s53, s5')
        a('s_lshl_b32 s42, s53, 7')
        a(f's_add_u32 s42, s42, {PML}')
        a('s_lshl_b32 s53, s53, 9')

    def mark_part():
        a(f'buffer_store_dwordx2 v[16:17], v3, {SWS}, s53 offen sc1')
        a('s_mov_b64 exec, 1')
        a(f'buffer_store_dwordx2 v[16:17], v10, {SWS}, s42 offen sc1')
        a('s_mov_b64 exec, -1')

    a('s_cmp_eq_u32 s58, 1')
    a('s_cbranch_scc1 L_mk1')
    a('s_cmp_eq_u32 s58, 2')
    a('s_cbranch_scc1 L_mk2')
    a('s_cmp_eq_u32 s58, 3')
    a('s_cbranch_scc1 L_mk3')
    part_slots(3)
    mark_part()
    a('s_lshl_b32 s61, s4, 11')
    a('s_lshl_b32 s62, s5, 6')
    a('s_add_u32 s61, s61, s62')
    a(f's_add_u32 s54, s61, {YOFF}')
    a('v_lshlrev_b32 v4, 2, v0')
    a('s_mov_b64 exec, 0xffff')
    a(f'buffer_store_dword v16, v4, {SWS}, s54 offen sc1')
    a('s_branch L_marked')
    a('L_mk1:')
    a('s_mul_i32 s42, s4, 28')
    a('s_add_u32 s42, s42, s5')
    a('s_lshl_b32 s42, s42, 4')
    a(f's_add_u32 s54, s42, {GOFF}')
    a('s_cmp_ge_u32 s5, 28')
    a('s_cbranch_scc1 L_marked')
    a('v_lshlrev_b32 v4, 1, v0')
    a('s_mov_b64 exec, 0x55')
    a(f'buffer_store_dword v16, v4, {SWS}, s54 offen sc1')
    a('s_branch L_marked')
    a('L_mk2:')
    a('s_lshl_b32 s42, s6, 2')
    a('s_branch L_marked')
    a('L_mk3:')
    for p in range(3):
        part_slots(p)
        mark_part()
    a('L_marked:')
    a('s_mov_b64 exec, 1')
    a('s_waitcnt vmcnt(0)')
    a(f'ds_add_rtn_u32 v19, v10, v18 offset:{F_INIT}')
    a('s_waitcnt lgkmcnt(0)')
    a('v_cmp_eq_u32 vcc, 3, v19')
    a('s_cbranch_vccz L_counted')
    a(f'buffer_atomic_add v18, v10, {SDBG}, 0 offen sc1')
    a('L_counted:')
    a('s_mov_b64 exec, -1')
    a('s_cmp_ge_u32 s5, 3')
    a('s_cbranch_scc1 L_noqg2')
    a('s_add_u32 s61, s5, 1')
    head_of(59, 's61')
    a('s_lshl_b32 s59, s59, 8')
    a('s_lshl_b32 s61, s58, 20')
    a('s_add_u32 s59, s59, s61')
    hp['p'] = 0
    a('s_waitcnt vmcnt(0)')
    for t in range(24):
        wq_issue()
    q_project()
    for r in range(4):
        a(f'v_min_u32 v{10+r}, -2, v{10+r}')
    a('s_mov_b32 exec_hi, 0')
    a(f'buffer_store_dwordx4 v[10:13], v2, {SWS}, s52 offen sc1')
    a('s_mov_b64 exec, -1')
    a('v_mov_b32 v10, 0')
    a('L_noqg2:')
    a('v_and_b32 v13, 31, v0')
    a('v_lshrrev_b32 v14, 5, v0')
    a('v_lshrrev_b32 v15, 4, v0')
    a('s_cmp_eq_u32 s58, 2')
    a('s_cbranch_scc1 L_h2_init')
    a('s_cmp_lg_u32 s58, 1')
    a('s_cbranch_scc1 L_init_done')
    a('s_cmp_ge_u32 s5, 28')
    a('s_cbranch_scc1 L_init_done')
    a('s_movk_i32 s59, 3584')
    a('v_mul_lo_u32 v12, v0, s59')
    for i in range(8):
        a(f's_mov_b32 m0, {W1+i*1024}')
        a(f's_add_u32 s61, s42, {i*64*3584}')
        a(f'buffer_load_dwordx4 v12, {SW1}, s61 offen {wpol} lds')
    a('v_and_b32 v12, 7, v0')
    a('v_lshlrev_b32 v12, 1, v12')
    a('v_lshl_add_u32 v12, v15, 11, v12')
    a('v_bfe_u32 v19, v0, 3, 1')
    a('v_lshl_add_u32 v12, v19, 7, v12')
    a('s_waitcnt vmcnt(0)')
    for t in range(8):
        for j in range(8):
            a(f'ds_read_u16 v{20+j}, v12 offset:{W1+(16*t+j)*16}')
        a('s_waitcnt lgkmcnt(0)')
        for k in range(4):
            a(f'v_lshl_or_b32 v{WXF+4*t+k}, v{21+2*k}, 16, v{20+2*k}')
    a('s_branch L_init_done')

    a('L_h2_init:')
    a('v_lshlrev_b32 v12, 10, v0')
    for i in range(28):
        a(f's_mov_b32 m0, {W2+i*256}')
        a(f's_add_u32 s61, s42, {i*65536}')
        a(f'buffer_load_dword v12, {SW2}, s61 offen {wpol} lds')
    a('v_bfe_u32 v19, v0, 1, 3')
    a('v_mul_u32_u24 v12, 896, v19')
    a('v_lshl_add_u32 v12, v15, 5, v12')
    a('v_and_b32 v19, 1, v0')
    a('v_lshl_add_u32 v12, v19, 1, v12')
    a('s_waitcnt vmcnt(0)')
    for t in range(7):
        for j in range(8):
            a(f'ds_read_u16 v{20+j}, v12 offset:{W2+(32*t+j)*4}')
        a('s_waitcnt lgkmcnt(0)')
        for k in range(4):
            a(f'v_lshl_or_b32 v{WXF+4*t+k}, v{21+2*k}, 16, v{20+2*k}')

    a('L_init_done:')
    head_of(50, 's58')
    a('s_lshl_b32 s59, s50, 17')
    a('s_lshl_b32 s61, s5, 5')
    a('s_add_u32 s59, s59, s61')
    a('v_lshrrev_b32 v19, 1, v0')
    a('v_lshlrev_b32 v19, 10, v19')
    a('v_and_b32 v20, 1, v0')
    a('v_lshl_add_u32 v19, v20, 4, v19')
    a('s_lshl_b32 s43, s58, 12')
    a(f's_add_u32 s43, s43, {WO}')
    for i in range(4):
        a(f's_add_u32 m0, s43, {i*1024}')
        a(f's_add_u32 s61, s59, {i*32768}')
        a(f'buffer_load_dwordx4 v19, {SWO}, s61 offen {wpol} lds')
    a('s_lshl_b32 s59, s58, 8')
    a('v_lshlrev_b32 v11, 3, v13')
    a('v_lshl_add_u32 v11, v14, 2, v11')
    a('v_add_u32 v9, s59, v11')
    a(f'buffer_load_dword v8, v9, {SX}, 0 offen')
    a(f'v_add_u32 v3, {OB}, v9')
    a(f'v_add_u32 v9, {HB}, v9')
    a('v_lshlrev_b32 v4, 4, v15')
    a(f's_add_u32 s61, s59, {OB}')
    a('v_add_u32 v4, s61, v4')
    a('s_lshl_b32 s61, s50, 14')
    a('v_lshlrev_b32 v12, 4, v0')
    a('v_add_u32 v1, s61, v12')
    a('v_and_b32 v20, 15, v0')
    a('v_lshl_add_u32 v2, v20, 1, v14')
    a('v_lshlrev_b32 v2, 7, v2')
    a('s_lshl_b32 s61, s50, 12')
    a(f's_add_u32 s61, s61, {PML}')
    a('v_add_u32 v2, s61, v2')
    a('v_lshlrev_b32 v5, 2, v20')
    a('s_lshl_b32 s61, s58, 6')
    a('v_add_u32 v5, s61, v5')
    a('v_lshlrev_b32 v6, 4, v13')
    a('v_lshl_add_u32 v6, v14, 11, v6')
    a('s_lshl_b32 s61, s58, 9')
    a(f's_add_u32 s61, s61, {YOFF}')
    a('v_add_u32 v6, s61, v6')
    a('v_lshlrev_b32 v19, 1, v20')
    a('v_lshl_add_u32 v19, v15, 8, v19')
    a('v_add_u32 v19, s43, v19')
    a('s_waitcnt vmcnt(0)')
    a('v_lshlrev_b32 v7, 16, v8')
    a('v_and_b32 v8, 0xffff0000, v8')
    for t in range(4):
        for j in range(8):
            a(f'ds_read_u16 v{20+j}, v19 offset:{(32*t+j)*32}')
        a('s_waitcnt lgkmcnt(0)')
        for k in range(4):
            a(f'v_lshl_or_b32 v{WOF+4*t+k}, v{21+2*k}, 16, v{20+2*k}')
    a('s_movk_i32 s59, 0x1000')
    a('s_movk_i32 s60, 0x2000')
    a('s_movk_i32 s61, 0x3000')
    a('L_ready:')
    a(f'buffer_load_dword v16, v10, {SDBG}, 0 offen sc1')
    a('s_waitcnt vmcnt(0)')
    a('v_cmp_gt_u32 vcc, 0x100, v16')
    a('s_cbranch_vccz L_ready_ok')
    a('s_sleep 32')
    a('s_sub_u32 s63, s63, 1')
    a('s_cbranch_scc0 L_ready')
    a('L_ready_ok:')
    stamp(3)

    def wait_cnt(lbl, vaddr):
        a(f'{lbl}:')
        a(f'ds_read_b32 v16, v{vaddr} offset:{F_CNT}')
        a('s_waitcnt lgkmcnt(0)')
        a('v_cmp_gt_u32 vcc, 4, v16')
        a(f's_cbranch_vccz {lbl}_ok')
        a('s_sleep 16')
        a('s_sub_u32 s63, s63, 1')
        a(f's_cbranch_scc0 {lbl}')
        a(f'{lbl}_ok:')

    def stage0(vml, vo):
        a(f'ds_read_b128 v[16:19], v{vml} offset:{PARTML}')
        a(f'ds_read_b128 v[20:23], v{vml} offset:{PARTML+16}')
        for w in range(4):
            a(f'ds_read_b64 v[{24+2*w}:{25+2*w}], v{vo} offset:{PART+512*w}')
        a('s_waitcnt lgkmcnt(4)')
        a('v_min3_f32 v33, v17, v19, v21')
        a('v_min_f32 v33, v33, v23')
        for w in range(4):
            a(f'v_sub_f32 v{17+2*w}, v33, v{17+2*w}')
        for w in range(4):
            a(f'v_exp_f32 v{17+2*w}, v{17+2*w}')
        a('v_lshlrev_b32 v36, 3, v0')
        a('s_waitcnt lgkmcnt(0)')
        a('v_mul_f32 v34, v17, v24')
        a('v_mul_f32 v35, v17, v25')
        a('v_mul_f32 v32, v17, v16')
        for w in range(1, 4):
            a(f'v_fmac_f32 v34, v{17+2*w}, v{24+2*w}')
            a(f'v_fmac_f32 v35, v{17+2*w}, v{25+2*w}')
            a(f'v_fmac_f32 v32, v{17+2*w}, v{16+2*w}')
        for r in (34, 35, 32, 33):
            a(f'v_min_u32 v{r}, -2, v{r}')
        a(f'buffer_store_dwordx2 v[34:35], v36, {SWS}, s53 offen sc1')
        a('s_mov_b64 exec, 1')
        a(f'buffer_store_dwordx2 v[32:33], v10, {SWS}, s42 offen sc1')
        a('s_mov_b64 exec, -1')

    a('s_cmp_eq_u32 s58, 3')
    a('s_cbranch_scc1 L_h3')
    a('s_lshl_b32 s62, s58, 2')
    a('v_mov_b32 v13, s62')
    wait_cnt('L_cntA', 13)
    a('s_branch L_gather')
    a('L_h3:')
    a('s_mul_i32 s52, s4, 0x1800')
    a(f's_add_u32 s52, s52, {QG}')
    a('s_add_u32 s51, s52, 0x1000')
    a('L_qg:')
    for i in range(6):
        a(f'buffer_load_dwordx4 {vr(16+4*i,4)}, v12, {SWS}, {"s52" if i < 4 else "s51"} offen offset:{1024*(i%4)} sc1')
    a('s_waitcnt vmcnt(0)')
    check_poison(range(16, 40), 40)
    a('s_cbranch_vccz L_qg_ok')
    a('s_sleep 16')
    a('s_sub_u32 s63, s63, 1')
    a('s_cbranch_scc0 L_qg')
    a('L_qg_ok:')
    for p in range(3):
        b = 16 + 8 * p
        for r in range(4):
            a(f'v_add_f32 v{b+r}, v{b+r}, v{b+4+r}')
        a(f'v_permlane32_swap_b32 v{b}, v{b+2}')
        a(f'v_permlane32_swap_b32 v{b+1}, v{b+3}')
        a(f'v_add_f32 v{b}, v{b}, v{b+2}')
        a(f'v_add_f32 v{b+1}, v{b+1}, v{b+3}')
        a(f'v_cvt_pk_bf16_f32 v{b}, v{b}, v{b+1}')
        a(f'ds_write_b32 v11, v{b} offset:{QT+256*(p+1)}')
    a('v_mov_b32 v16, 1')
    a('s_waitcnt lgkmcnt(0)')
    a(f'ds_write_b32 v10, v16 offset:{F_QRDY}')
    a('s_mov_b32 s51, 0')
    a('L_pub:')
    a('s_lshl_b32 s62, s51, 2')
    a('v_mov_b32 v13, s62')
    wait_cnt('L_cntB', 13)
    part_slots('s51')
    a('v_lshlrev_b32 v13, 3, v13')
    a('s_lshl_b32 s62, s51, 11')
    a('v_lshlrev_b32 v14, 3, v0')
    a('v_add_u32 v14, s62, v14')
    stage0(13, 14)
    a('s_add_u32 s51, s51, 1')
    a('s_cmp_lt_u32 s51, 3')
    a('s_cbranch_scc1 L_pub')
    a('s_barrier')
    stamp(4)
    a('L_gather:')
    a(f'buffer_load_dwordx2 v[14:15], v2, {SWS}, 0 offen sc1')
    a('s_waitcnt vmcnt(0)')
    a('v_max_u32 v13, v14, v15')
    a('v_cmp_eq_u32 vcc, -1, v13')
    a('s_cbranch_vccz L_st1')
    a('s_cmp_eq_u32 s58, 3')
    a('s_cbranch_scc1 L_gather_ns')
    a('s_sleep 16')
    a('L_gather_ns:')
    a('s_sub_u32 s63, s63, 1')
    a('s_cbranch_scc0 L_gather')
    a('L_st1:')

    def o_loads():
        for i in range(16):
            a(f'buffer_load_dwordx4 {vr(16+4*i,4)}, v1, {SWS}, {("0", "s59", "s60", "s61")[i >> 2]} offen offset:{1024*(i&3)} sc1')
    o_loads()
    stamp(5)
    a(f'v_min_f32_dpp v13, v15, v15 row_ror:8 {DPP}')
    for r in (4, 2, 1):
        a(f'v_min_f32_dpp v13, v13, v13 row_ror:{r} {DPP}')
    a('v_mov_b32 v12, v13')
    a('v_permlane32_swap_b32 v12, v13')
    a('v_min_f32 v13, v12, v13')
    a('v_sub_f32 v15, v13, v15')
    a('v_exp_f32 v15, v15')
    a('v_mul_f32 v14, v14, v15')
    for r in (8, 4, 2, 1):
        a(f'v_add_f32_dpp v14, v14, v14 row_ror:{r} {DPP}')
    a('v_mov_b32 v12, v14')
    a('v_permlane32_swap_b32 v12, v14')
    a('v_add_f32 v14, v12, v14')
    a('v_rcp_f32 v14, v14')
    a('s_branch L_st1w')
    a('L_st1r:')
    o_loads()
    a('L_st1w:')
    a('s_waitcnt vmcnt(0)')
    check_poison(range(16, 80), 13)
    a('s_cbranch_vccz L_st1_ok')
    a('s_sub_u32 s63, s63, 1')
    a('s_cbranch_scc0 L_st1r')
    a('L_st1_ok:')
    stamp(6)
    for r in range(4):
        a(f'v_mul_f32_dpp v{16+r}, v15, v{16+r} row_newbcast:0 {DPP}')
    for r in range(4):
        a(f'v_mul_f32_dpp v{20+r}, v15, v{20+r} row_newbcast:1 {DPP}')
    for i in range(2, 16):
        for r in range(4):
            a(f'v_fmac_f32_dpp v{16+4*(i&1)+r}, v15, v{16+4*i+r} row_newbcast:{i} {DPP}')
    for r in range(4):
        a(f'v_add_f32 v{16+r}, v{16+r}, v{20+r}')
    a('v_permlane32_swap_b32 v16, v18')
    a('v_permlane32_swap_b32 v17, v19')
    a('v_add_f32 v16, v16, v18')
    a('v_add_f32 v17, v17, v19')
    a('v_mul_f32 v16, v16, v14')
    a('v_mul_f32 v17, v17, v14')
    a('v_cvt_pk_bf16_f32 v16, v16, v17')
    a('ds_write_b32 v3, v16')
    a('s_waitcnt lgkmcnt(0)')
    for t in range(4):
        a(f'ds_read_b128 {vr(20+4*t,4)}, v4 offset:{64*t}')
    for t in range(4):
        a(f's_waitcnt lgkmcnt({3-t})')
        a(f'v_mfma_f32_16x16x32_bf16 v[16:19], {vr(20+4*t,4)}, {vr(WOF+4*t,4)}, {"0" if t == 0 else "v[16:19]"}')
    a('s_mov_b64 exec, 0xffff')
    a(f'ds_write_b32 v5, v16 offset:{YB}')
    a('s_mov_b64 exec, -1')
    a('s_waitcnt lgkmcnt(0)')
    a('s_cmp_eq_u32 s58, 3')
    a('s_cbranch_scc1 L_b3')
    a('v_mov_b32 v13, 96')
    a('v_lshlrev_b32 v14, 3, v0')
    a('v_add_u32 v14, 0x1800, v14')
    a('s_barrier')
    stamp(4)
    a('s_cmp_lg_u32 s58, 0')
    a('s_cbranch_scc1 L_b3')
    stage0(13, 14)
    stamp(5)
    a('L_b3:')
    a('s_barrier')
    a('s_cmp_lg_u32 s58, 0')
    a('s_cbranch_scc1 L_st2')
    for w in range(4):
        a(f'ds_read_b32 v{16+w}, v5 offset:{YB+64*w}')
    a('s_waitcnt lgkmcnt(2)')
    a('v_add_f32 v16, v16, v17')
    a('s_waitcnt lgkmcnt(0)')
    a('v_add_f32 v18, v18, v19')
    a('v_add_f32 v16, v16, v18')
    a('v_min_u32 v16, -2, v16')
    a('s_mov_b64 exec, 0xffff')
    a(f'buffer_store_dword v16, v5, {SWS}, s54 offen sc1')
    a('s_mov_b64 exec, -1')
    stamp(7)
    a('L_st2:')
    for i, so in enumerate(('0', 's59', 's60', 's61')):
        a(f'buffer_load_dwordx4 {vr(16+4*i,4)}, v6, {SWS}, {so} offen sc1')
    a('s_waitcnt vmcnt(0)')
    check_poison(range(16, 32), 34)
    retry('L_st2')
    stamp(8)
    for r in range(4):
        a(f'v_add_f32 v{16+r}, v{16+r}, v{20+r}')
        a(f'v_add_f32 v{24+r}, v{24+r}, v{28+r}')
    for r in range(4):
        a(f'v_add_f32 v{16+r}, v{16+r}, v{24+r}')
    a('v_permlane32_swap_b32 v16, v18')
    a('v_permlane32_swap_b32 v17, v19')
    a('v_add_f32 v16, v16, v18')
    a('v_add_f32 v17, v17, v19')
    a('v_cvt_pk_bf16_f32 v16, 0, v16')
    a('v_cvt_pk_bf16_f32 v17, 0, v17')
    a('v_add_f32 v16, v16, v7')
    a('v_add_f32 v17, v17, v8')
    a('v_cvt_pk_bf16_f32 v16, v16, v17')
    a('ds_write_b32 v9, v16')
    a('s_waitcnt lgkmcnt(0)')
    a('s_barrier')
    a('s_cmp_eq_u32 s58, 2')
    a('s_cbranch_scc1 L_st3')
    a('s_cmp_lg_u32 s58, 1')
    a('s_cbranch_scc1 L_hend')
    a('s_cmp_ge_u32 s5, 28')
    a('s_cbranch_scc1 L_hend')
    a('v_lshlrev_b32 v13, 4, v0')
    a(f'ds_read_b128 v[48:51], v13 offset:{HB}')
    a('v_lshlrev_b32 v11, 1, v0')
    a('s_waitcnt lgkmcnt(0)')
    layernorm(48, 52, 60, 62, False)
    for t in range(8):
        a(f'v_mfma_f32_16x16x32_bf16 {vr(16+4*t,4)}, v[48:51], {vr(WXF+4*t,4)}, 0')
    for rg in range(4):
        for hf in range(2):
            a(f'v_add_f32_dpp v13, v{16+8*rg+hf}, v{16+8*rg+4+2+hf} quad_perm:[0,1,2,3] row_mask:{1<<rg:#x} bank_mask:{(3, 12)[hf]:#x}')
    a(f'v_add_f32_dpp v13, v13, v13 row_ror:8 {DPP}')
    a('v_mov_b32 v14, v13')
    a('v_permlane16_swap_b32 v13, v14')
    a('v_add_f32 v13, v13, v14')
    a('v_mov_b32 v14, v13')
    a('v_permlane32_swap_b32 v13, v14')
    a('v_add_f32 v13, v13, v14')
    a('v_cvt_pk_bf16_f32 v13, 0, v13')
    a(f'v_mul_f32 v14, {LOG2E | 0x80000000:#x}, v13')
    a('v_exp_f32 v14, v14')
    a('v_add_f32 v14, 1.0, v14')
    a('v_rcp_f32 v14, v14')
    a('v_mul_f32 v13, v13, v14')
    a(f'v_mov_b32_dpp v14, v13 quad_perm:[1,0,3,2] {DPP}')
    a('v_cvt_pk_bf16_f32 v13, v13, v14')
    a('v_min_u32 v13, -2, v13')
    a('s_mov_b64 exec, 0x55')
    a(f'buffer_store_dword v13, v11, {SWS}, s54 offen sc1')
    stamp(9)
    a('s_branch L_hend')
    a('L_st3:')
    a('v_mov_b32 v13, s42')
    a(f'ds_read_b32 v13, v13 offset:{HB}')
    a('v_and_b32 v12, 7, v0')
    a('v_mul_u32_u24 v11, 448, v12')
    a('v_lshrrev_b32 v12, 4, v0')
    a('v_lshl_add_u32 v11, v12, 4, v11')
    a(f'v_add_u32 v11, {GOFF}, v11')
    a('v_and_b32 v14, 1, v0')
    a('v_lshlrev_b32 v14, 4, v14')
    a('v_sub_u32 v14, 16, v14')
    a('s_mov_b32 s44, 0xcccccccc'); a('s_mov_b32 s45, 0xcccccccc')
    a('s_mov_b32 s46, 0xf0f0f0f0'); a('s_mov_b32 s47, 0xf0f0f0f0')
    a('s_mov_b32 s48, 0xff0000ff'); a('s_mov_b32 s49, 0')
    a('s_waitcnt lgkmcnt(0)')
    a('v_lshlrev_b32 v13, v14, v13')
    a('v_and_b32 v13, 0xffff0000, v13')
    a('L_st3p:')
    for t in range(7):
        a(f'buffer_load_dwordx4 {vr(16+4*t,4)}, v11, {SWS}, 0 offen offset:{64*t} sc1')
    a('s_waitcnt vmcnt(0)')
    check_poison(range(16, 44), 48)
    retry('L_st3p')
    stamp(9)
    for t in range(7):
        a(f'v_mfma_f32_16x16x32_bf16 v[44:47], {vr(16+4*t,4)}, {vr(WXF+4*t,4)}, {"0" if t == 0 else "v[44:47]"}')
    a('v_cndmask_b32 v44, v44, v45, s[44:45]')
    a('v_cndmask_b32 v46, v46, v47, s[44:45]')
    a('v_cndmask_b32 v44, v44, v46, s[46:47]')
    a('v_cndmask_b32 v16, 0, v44, s[48:49]')
    for r in (2, 4, 8):
        a(f'v_add_f32_dpp v16, v16, v16 row_ror:{r} {DPP}')
    a('v_mov_b32 v17, v16')
    a('v_permlane16_swap_b32 v16, v17')
    a('v_add_f32 v16, v16, v17')
    a('v_cvt_pk_bf16_f32 v16, 0, v16')
    a('v_add_f32 v16, v16, v13')
    a(f'v_mov_b32_dpp v17, v16 quad_perm:[1,0,3,2] {DPP}')
    a('v_cvt_pk_bf16_f32 v16, v16, v17')
    a('s_mov_b64 exec, 1')
    a(f'buffer_store_dword v16, v10, {SOUT}, s42 offen')
    stamp(10)
    a('L_hend:')
    dump_stamps(11, SWS)
    a('L_end:')
    a('s_endpgm')

    ref = open('cdna_kernels/' + NAME + '.s.ref').read().split('\n')
    head = [l for l in ref if l.startswith(';') and '@launch' not in l and 'Override launch' not in l and 'grid=ceil' not in l]
    out = '\n'.join(head) + '\n'
    out += f'; @launch grid=(256,1,1) block=(512,1,1) lds={lds}\n'
    out += '.amdgcn_target "amdgcn-amd-amdhsa--gfx950"\n.text\n'
    out += f'.globl {KERN}\n.p2align 8\n.type {KERN},@function\n'
    out += a.text()
    nv = 128
    out += '.section .rodata,"a"\n.p2align 6\n'
    out += f'.amdhsa_kernel {KERN}\n'
    out += f'  .amdhsa_next_free_vgpr {nv}\n  .amdhsa_next_free_sgpr {96 if diag else 64}\n  .amdhsa_accum_offset {nv}\n'
    out += '  .amdhsa_group_segment_fixed_size 0\n  .amdhsa_kernarg_size 88\n  .amdhsa_user_sgpr_count 2\n'
    out += '  .amdhsa_user_sgpr_kernarg_segment_ptr 1\n  .amdhsa_system_sgpr_workgroup_id_x 1\n'
    out += '  .amdhsa_float_denorm_mode_32 3\n'
    out += '.end_amdhsa_kernel\n'
    return out


if __name__ == '__main__':
    kw = eval('dict(' + (sys.argv[2] if len(sys.argv) > 2 else '') + ')')
    open(sys.argv[1], 'w').write(gen(**kw))
```
